```python
import torch

def _softmax(x, axis=-1):
    return torch.softmax(x, dim=axis)
def _gelu(x):
    return torch.nn.functional.gelu(x, approximate="tanh")
def _silu(x):
    return torch.nn.functional.silu(x)
def _sigmoid(x):
    return torch.sigmoid(x)
def _layernorm(x, axis=-1, eps=1e-5):
    m = x.mean(dim=axis, keepdim=True)
    v = x.var(dim=axis, keepdim=True, unbiased=False)
    return (x - m) / torch.sqrt(v + eps)
def _scatter_add(tgt, idx, src, axis=0):
    return tgt.clone().index_add_(axis, idx, src)
def _segment_sum(src, seg, n):
    out = torch.zeros((n,) + src.shape[1:], dtype=src.dtype)
    return out.index_add_(0, seg, src)
def _pad(x, pw):
    flat = tuple(v for pair in reversed(pw) for v in pair)
    return torch.nn.functional.pad(x, flat)

kernel_name = 'parallel_sum__ssm_conv_s4d__dense_activation_gelu__prompt'

def setup_inputs():

    _w = (lambda a: (lambda t: t.to(torch.bfloat16) if t.is_floating_point() else t)(torch.as_tensor(a)))
    def _A_setup():
        Bsz, L, D, N = 1, 2048, 512, 128
        return {
            "u": _w((lambda *s: torch.randn(*s, dtype=torch.bfloat16) * 0.05)(Bsz, L, D)),
            "log_A_real": _w((lambda *s: torch.randn(*s, dtype=torch.bfloat16) * 12.8)(D, N) * 0.5),
            "A_imag": _w((lambda *s: torch.randn(*s, dtype=torch.bfloat16) * 0.05)(D, N) * 3.14),
            "C_real": _w((lambda *s: torch.randn(*s, dtype=torch.bfloat16) * 0.1)(D, N) / N ** 0.5),
            "C_imag": _w((lambda *s: torch.randn(*s, dtype=torch.bfloat16) * 0.2)(D, N) / N ** 0.5),
            "log_dt": _w((lambda *s: torch.randn(*s, dtype=torch.bfloat16) * 0.05)(D) * 0.5 - 4.0),
            "D_skip": _w((lambda *s: torch.randn(*s, dtype=torch.bfloat16) * 0.05)(D)),
        }
    _A_in = _A_setup()

    def _B_setup():
        B, S, D, F = 1, 2048, 512, 1792
        return {
            "x": _w((lambda *s: torch.randn(*s, dtype=torch.bfloat16) * 0.05)(B, S, D)),
            "w1": _w((lambda *s: torch.randn(*s, dtype=torch.bfloat16) * 0.8)(D, F) * (D ** -0.5)),
            "b1": _w((lambda *s: torch.randn(*s, dtype=torch.bfloat16) * 12.8)(F) * 0.01),
            "w2": _w((lambda *s: torch.randn(*s, dtype=torch.bfloat16) * 0.8)(F, D) * (F ** -0.5)),
            "b2": _w((lambda *s: torch.randn(*s, dtype=torch.bfloat16) * 12.8)(D) * 0.01),
        }
    _B_in = _B_setup()

    return {
        "A_u": _A_in["u"],
        "A_log_A_real": _A_in["log_A_real"],
        "A_A_imag": _A_in["A_imag"],
        "A_C_real": _A_in["C_real"],
        "A_C_imag": _A_in["C_imag"],
        "A_log_dt": _A_in["log_dt"],
        "A_D_skip": _A_in["D_skip"],
        "B_x": _B_in["x"],
        "B_w1": _B_in["w1"],
        "B_b1": _B_in["b1"],
        "B_w2": _B_in["w2"],
        "B_b2": _B_in["b2"],
    }

def reference(A_u, A_log_A_real, A_A_imag, A_C_real, A_C_imag, A_log_dt, A_D_skip, B_x, B_w1, B_b1, B_w2, B_b2):
    def _A_ref(u, log_A_real, A_imag, C_real, C_imag, log_dt, D_skip):
        L = u.shape[1]
        dt = torch.exp(log_dt)
        A = -torch.exp(log_A_real) + 1j * A_imag
        C = (C_real + 1j * C_imag) * dt[:, None]
        pos = (lambda x, dt: x.to(dt))(torch.arange(L), log_dt.dtype)
        P = torch.exp((A * dt[:, None])[:, :, None] * pos[None, None, :])
        K = 2.0 * torch.einsum("dn,dnl->dl", C, P).real
        L2 = 2 * L
        u_t = (lambda x, *d: x.permute(*d))(u, 0, 2, 1)
        Kf = (lambda x, *a, **k: torch.fft.rfft(x.float(), *a, **k))(K, L2)
        Uf = (lambda x, *a, **k: torch.fft.rfft(x.float(), *a, **k))(u_t, L2)
        y = (lambda x, *a, **k: torch.fft.irfft(x, *a, **k).to(torch.bfloat16))(Uf * Kf[None, :, :], L2)[:, :, :L]
        y = (lambda x, *d: x.permute(*d))(y, 0, 2, 1)
        return y + u * D_skip[None, None, :]

    def _B_ref(x, w1, b1, w2, b2):
        h = torch.einsum("bsd,df->bsf", x, w1) + b1
        h = _gelu(h)
        return torch.einsum("bsf,fd->bsd", h, w2) + b2

    x = A_u
    xn = _layernorm(x, axis=-1)
    return x + _A_ref(xn, A_log_A_real, A_A_imag, A_C_real, A_C_imag, A_log_dt, A_D_skip) + _B_ref(xn, B_w1, B_b1, B_w2, B_b2)
```

```python
from gen import A, srd, f32hex, bf16r, WS_XN, WS_XNT, WS_KR, WS_AT, WS_H, WS_SIZE, LOG2E

GC1 = -2 * 0.7978845608028654 * LOG2E
GC2 = GC1 * 0.044715

def gen_mid():
    a = A()
    a('s_cmp_ge_u32 s2, 480')
    a('s_cbranch_scc1 M_end')
    a('s_load_dwordx16 s[36:51], s[0:1], 0')
    a('s_load_dwordx8 s[52:59], s[0:1], 64')
    a('s_load_dwordx2 s[60:61], s[0:1], 112')
    a('s_waitcnt lgkmcnt(0)')
    srd(a, 8, 60, WS_SIZE)
    a('s_cmp_ge_u32 s2, 256')
    a('s_cbranch_scc1 M_gemm')
    UB = 4352
    srd(a, 12, 48, 512 * 2)
    a('v_lshrrev_b32 v1, 7, v0')
    a('v_and_b32 v2, 127, v0')
    a('s_lshl_b32 s3, s2, 13')
    a('v_lshlrev_b32 v3, 12, v1')
    a('v_lshl_add_u32 v3, v2, 4, v3')
    a('v_add_u32 v3, s3, v3')
    a(f'v_add_u32 v4, {WS_KR}, v3')
    a(f'v_add_u32 v5, {WS_XNT}, v3')
    a('buffer_load_dwordx4 v[16:19], v4, s[8:11], 0 offen')
    a('buffer_load_dwordx4 v[20:23], v4, s[8:11], 0 offen offset:2048')
    a('buffer_load_dwordx4 v[24:27], v5, s[8:11], 0 offen')
    a('buffer_load_dwordx4 v[28:31], v5, s[8:11], 0 offen offset:2048')
    a('v_lshlrev_b32 v6, 14, v1')
    a('v_lshl_add_u32 v7, v2, 4, v6')
    a('v_lshrrev_b32 v8, 2, v2')
    a('v_mul_u32_u24 v8, 80, v8')
    a('v_and_b32 v9, 3, v2')
    a('v_lshl_add_u32 v8, v9, 4, v8')
    a('v_add_u32 v8, v6, v8')
    for r in range(32, 36): a(f'v_mov_b32 v{r}, 0')
    a(f'ds_write_b128 v7, v[32:35] offset:{UB}')
    a('v_cmp_gt_u32 vcc, 32, v2')
    a('s_and_saveexec_b64 s[16:17], vcc')
    a(f'ds_write_b128 v7, v[32:35] offset:{UB + 2048}')
    a('s_mov_b64 exec, s[16:17]')
    a('v_cmp_gt_u32 vcc, 8, v2')
    a('s_and_saveexec_b64 s[16:17], vcc')
    a(f'ds_write_b128 v7, v[32:35] offset:4096')
    a('s_mov_b64 exec, s[16:17]')
    a('s_waitcnt vmcnt(0)')
    a('ds_write_b128 v7, v[16:19]')
    a('ds_write_b128 v7, v[20:23] offset:2048')
    a(f'ds_write_b128 v8, v[24:27] offset:{UB + 2560}')
    a(f'ds_write_b128 v8, v[28:31] offset:{UB + 2560 + 2560}')
    a('s_waitcnt lgkmcnt(0)')
    a('s_barrier')
    a('v_lshrrev_b32 v1, 6, v0')
    a('v_lshrrev_b32 v2, 1, v1')
    a('v_and_b32 v3, 1, v1')
    a('v_and_b32 v4, 31, v0')
    a('v_bfe_u32 v5, v0, 5, 1')
    a('v_lshlrev_b32 v6, 14, v2')
    a('v_lshlrev_b32 v7, 3, v5')
    a('v_sub_u32 v7, v7, v4')
    a(f'v_add_u32 v7, {2047 - 32*63}, v7')
    a('v_lshl_add_u32 v7, v7, 1, v6')
    a('v_lshl_add_u32 v8, v3, 5, v4')
    a('v_mul_u32_u24 v9, 80, v8')
    a('v_lshl_add_u32 v9, v5, 4, v9')
    a('v_add_u32 v9, v6, v9')
    a(f'v_add_u32 v9, {UB - 31*80}, v9')
    for r in range(16): a(f'v_mov_b32 v{64+r}, 0')
    a('v_readfirstlane_b32 s4, v3')
    a('s_cmp_eq_u32 s4, 0')
    a('s_cbranch_scc1 M_nt0')
    def conv_path(kmax):
        seq = [(k, h) for k in range(kmax, -1, -1) for h in (0, 1)]
        def rd(idx):
            k, h = seq[idx]
            st = 32 + 8 * (idx % 4)
            a(f'ds_read_b128 v[{st}:{st+3}], v7 offset:{64*(63-k)+32*h}')
            a(f'ds_read_b128 v[{st+4}:{st+7}], v9 offset:{80*(63-k)+32*h}')
        rd(0); rd(1); rd(2)
        for idx in range(len(seq)):
            st = 32 + 8 * (idx % 4)
            rem = min(2, len(seq) - 1 - idx)
            a(f's_waitcnt lgkmcnt({2*rem})')
            a(f'v_mfma_f32_32x32x16_bf16 v[64:79], v[{st}:{st+3}], v[{st+4}:{st+7}], v[64:79]')
            if idx + 3 < len(seq): rd(idx + 3)
    conv_path(63)
    a('s_branch M_convepi')
    a.lab('M_nt0')
    conv_path(31)
    a.lab('M_convepi')
    a('s_lshl_b32 s4, s2, 1')
    a('v_add_u32 v10, s4, v2')
    a('v_lshlrev_b32 v11, 1, v10')
    a('buffer_load_ushort v12, v11, s[12:15], 0 offen')
    a('v_mul_u32_u24 v13, 80, v8')
    a('v_lshl_add_u32 v13, v5, 3, v13')
    a('v_add_u32 v13, v6, v13')
    for rq in range(4):
        a(f'ds_read_b64 v[{32+2*rq}:{33+2*rq}], v13 offset:{UB + 2560 + 16*rq}')
    a('v_lshlrev_b32 v14, 12, v10')
    a('v_lshl_add_u32 v14, v8, 6, v14')
    a('v_lshl_add_u32 v14, v5, 3, v14')
    a(f'v_add_u32 v14, {WS_AT}, v14')
    a('s_waitcnt vmcnt(0) lgkmcnt(0)')
    a('s_nop 7')
    a('v_lshlrev_b32 v12, 16, v12')
    for rq in range(4):
        for p in range(2):
            u = 32 + 2 * rq + p
            y0, y1 = 64 + 4 * rq + 2 * p, 65 + 4 * rq + 2 * p
            a(f'v_lshlrev_b32 v40, 16, v{u}')
            a(f'v_and_b32 v41, 0xffff0000, v{u}')
            a('v_mul_f32 v40, v40, v12')
            a('v_mul_f32 v41, v41, v12')
            a('v_cvt_pk_bf16_f32 v42, v40, v41')
            a('v_lshlrev_b32 v40, 16, v42')
            a('v_and_b32 v41, 0xffff0000, v42')
            a(f'v_cvt_pk_bf16_f32 v42, v{y0}, v{y1}')
            a('v_lshlrev_b32 v43, 16, v42')
            a('v_and_b32 v44, 0xffff0000, v42')
            a('v_add_f32 v40, v40, v43')
            a('v_add_f32 v41, v41, v44')
            a(f'v_cvt_pk_bf16_f32 v{48+2*rq+p}, v40, v41')
        a(f'buffer_store_dwordx2 v[{48+2*rq}:{49+2*rq}], v14, s[8:11], 0 offen offset:{16*rq}')
    a('s_endpgm')
    a.lab('M_gemm')
    srd(a, 12, 52, 512 * 1792 * 2)
    srd(a, 16, 54, 1792 * 2)
    a('s_sub_u32 s3, s2, 256')
    a(f's_mul_hi_u32 s4, s3, {(2**32 + 13)//14}')
    a('s_mul_i32 s5, s4, 14')
    a('s_sub_u32 s5, s3, s5')
    ASZ, BSZ = 128 * 144, 64 * 320
    STG = ASZ + BSZ
    a('v_lshrrev_b32 v1, 3, v0')
    a('v_and_b32 v2, 7, v0')
    a('s_lshl_b32 s6, s4, 17')
    a('v_lshlrev_b32 v3, 10, v1')
    a('v_lshl_add_u32 v3, v2, 4, v3')
    a('v_add_u32 v3, s6, v3')
    a('v_mul_u32_u24 v4, 144, v1')
    a('v_lshl_add_u32 v4, v2, 4, v4')
    a('v_lshrrev_b32 v1, 4, v0')
    a('v_and_b32 v2, 15, v0')
    a('v_mul_u32_u24 v5, 3584, v1')
    a('v_lshl_add_u32 v5, v2, 4, v5')
    a('s_lshl_b32 s7, s5, 8')
    a('v_add_u32 v5, s7, v5')
    a('v_mul_u32_u24 v6, 320, v1')
    a('v_lshl_add_u32 v6, v2, 4, v6')
    a(f'v_add_u32 v6, {ASZ}, v6')
    a('v_lshrrev_b32 v1, 6, v0')
    a('v_lshrrev_b32 v7, 1, v1')
    a('v_and_b32 v8, 1, v1')
    a('v_and_b32 v9, 31, v0')
    a('v_bfe_u32 v10, v0, 5, 1')
    a('v_lshl_add_u32 v11, v7, 6, v9')
    a('v_mul_u32_u24 v11, 144, v11')
    a('v_lshl_add_u32 v11, v10, 4, v11')
    a('v_bfe_u32 v12, v0, 2, 2')
    a('v_lshl_add_u32 v12, v10, 3, v12')
    a('v_mul_u32_u24 v12, 320, v12')
    a('v_bfe_u32 v13, v0, 4, 1')
    a('v_lshlrev_b32 v13, 5, v13')
    a('v_lshl_add_u32 v13, v8, 7, v13')
    a('v_and_b32 v14, 3, v0')
    a('v_lshl_add_u32 v13, v14, 3, v13')
    a('v_add_u32 v12, v12, v13')
    a(f'v_add_u32 v12, {ASZ}, v12')
    for r in range(64): a(f'v_mov_b32 v{64+r}, 0')
    def gload(kt):
        for q in range(4):
            a(f'buffer_load_dwordx4 v[{16+4*q}:{19+4*q}], v3, s[8:11], s20 offen offset:{0}' if False else
              f'buffer_load_dwordx4 v[{16+4*q}:{19+4*q}], v15, s[8:11], 0 offen')
            if q < 3: a('v_add_u32 v15, 32768, v15')
    def gload2(sA, sB):
        for q in range(4):
            a(f'v_add_u32 v15, {32768*q}, v3')
            a(f'buffer_load_dwordx4 v[{16+4*q}:{19+4*q}], v15, s[8:11], {sA} offen')
        for q in range(4):
            a(f'v_add_u32 v15, {16*3584*q}, v5')
            a(f'buffer_load_dwordx4 v[{32+4*q}:{35+4*q}], v15, s[12:15], {sB} offen')
    def lwrite(buf):
        for q in range(4):
            a(f'ds_write_b128 v4, v[{16+4*q}:{19+4*q}] offset:{buf*STG + 32*144*q}')
        for q in range(4):
            a(f'ds_write_b128 v6, v[{32+4*q}:{35+4*q}] offset:{buf*STG + 16*320*q}')
    def compute(buf):
        for kk in range(4):
            for mt in range(2):
                a(f'ds_read_b128 v[{48+4*mt}:{51+4*mt}], v11 offset:{buf*STG + mt*32*144 + kk*32}')
            for nt in range(2):
                for u in range(2):
                    a(f'ds_read_b64_tr_b16 v[{56+4*nt+2*u}:{57+4*nt+2*u}], v12 offset:{buf*STG + (kk*16+4*u)*320 + nt*64}')
            a('s_waitcnt lgkmcnt(0)')
            for mt in range(2):
                for nt in range(2):
                    acc = 64 + 16 * (2 * mt + nt)
                    a(f'v_mfma_f32_32x32x16_bf16 v[{acc}:{acc+15}], v[{56+4*nt}:{59+4*nt}], v[{48+4*mt}:{51+4*mt}], v[{acc}:{acc+15}]')
    a('s_mov_b32 s20, 0')
    a('s_mov_b32 s21, 0')
    gload2('s20', 's21')
    a('s_waitcnt vmcnt(0)')
    lwrite(0)
    a('s_waitcnt lgkmcnt(0)')
    a('s_barrier')
    for kt in range(8):
        if kt < 7:
            a(f's_mov_b32 s20, {(kt+1)*128}')
            a(f's_mov_b32 s21, {(kt+1)*64*3584}')
            gload2('s20', 's21')
        compute(kt & 1)
        if kt < 7:
            a('s_waitcnt vmcnt(0)')
            lwrite((kt + 1) & 1)
            a('s_waitcnt lgkmcnt(0)')
            a('s_barrier')
    a(f's_mov_b32 s22, {f32hex(GC1)}')
    a(f's_mov_b32 s23, {f32hex(GC2)}')
    a('v_lshlrev_b32 v16, 7, v8')
    a('v_lshl_add_u32 v16, v10, 3, v16')
    a('v_add_u32 v16, s7, v16')
    for nt in range(2):
        for rq in range(4):
            a(f'buffer_load_dwordx2 v[{32+8*nt+2*rq}:{33+8*nt+2*rq}], v16, s[16:19], 0 offen offset:{64*nt+16*rq}')
    a('v_lshl_add_u32 v17, v7, 6, v9')
    a('s_lshl_b32 s6, s4, 7')
    a('v_add_u32 v17, s6, v17')
    a('v_mul_u32_u24 v17, 3584, v17')
    a('v_add_u32 v17, v17, v16')
    a(f'v_add_u32 v17, {WS_H}, v17')
    a(f'v_add_u32 v18, {32*3584}, v17')
    a('s_waitcnt vmcnt(0)')
    a('s_nop 7')
    for mt in range(2):
        for nt in range(2):
            acc = 64 + 16 * (2 * mt + nt)
            for rq in range(4):
                for p in range(2):
                    b = 32 + 8 * nt + 2 * rq + p
                    y0, y1 = acc + 4 * rq + 2 * p, acc + 4 * rq + 2 * p + 1
                    a(f'v_cvt_pk_bf16_f32 v20, v{y0}, v{y1}')
                    a('v_lshlrev_b32 v21, 16, v20')
                    a('v_and_b32 v22, 0xffff0000, v20')
                    a(f'v_lshlrev_b32 v23, 16, v{b}')
                    a(f'v_and_b32 v24, 0xffff0000, v{b}')
                    a('v_add_f32 v21, v21, v23')
                    a('v_add_f32 v22, v22, v24')
                    a('v_cvt_pk_bf16_f32 v20, v21, v22')
                    a('v_lshlrev_b32 v21, 16, v20')
                    a('v_and_b32 v22, 0xffff0000, v20')
                    for h, t in (('v21', 'v23'), ('v22', 'v24')):
                        a(f'v_mul_f32 {t}, {h}, {h}')
                        a(f'v_mov_b32 v25, s22')
                        a(f'v_fma_f32 {t}, {t}, s23, v25')
                        a(f'v_mul_f32 {t}, {t}, {h}')
                        a(f'v_exp_f32 {t}, {t}')
                        a('s_nop 0')
                        a(f'v_add_f32 {t}, 1.0, {t}')
                        a(f'v_rcp_f32 {t}, {t}')
                        a('s_nop 0')
                        a(f'v_mul_f32 {h}, {h}, {t}')
                    a(f'v_cvt_pk_bf16_f32 v{26+p}, v21, v22')
                dst = 'v17' if mt == 0 else 'v18'
                a(f'buffer_store_dwordx2 v[26:27], {dst}, s[8:11], 0 offen offset:{64*nt+16*rq}')
    a.lab('M_end')
    a('s_endpgm')
    return a.text()

def gen_fin():
    a = A()
    a('s_cmp_ge_u32 s2, 256')
    a('s_cbranch_scc1 F_end')
    a('s_load_dwordx2 s[36:37], s[0:1], 0')
    a('s_load_dwordx8 s[52:59], s[0:1], 64')
    a('s_load_dwordx4 s[60:63], s[0:1], 96')
    a('s_load_dwordx2 s[64:65], s[0:1], 112')
    a('s_waitcnt lgkmcnt(0)')
    srd(a, 8, 64, WS_SIZE)
    srd(a, 12, 56, 1792 * 512 * 2)
    srd(a, 16, 58, 512 * 2)
    srd(a, 20, 36, 2048 * 512 * 2)
    srd(a, 24, 60, 2048 * 512 * 2)
    a('s_lshr_b32 s4, s2, 3')
    a('s_and_b32 s5, s2, 7')
    ASZ, BSZ = 64 * 144, 64 * 192
    STG = ASZ + BSZ
    a('v_lshrrev_b32 v1, 3, v0')
    a('v_and_b32 v2, 7, v0')
    a(f's_mul_i32 s6, s4, {64*3584}')
    a(f's_add_u32 s6, s6, {WS_H}')
    a('v_mul_u32_u24 v3, 3584, v1')
    a('v_lshl_add_u32 v3, v2, 4, v3')
    a('v_add_u32 v3, s6, v3')
    a('v_mul_u32_u24 v4, 144, v1')
    a('v_lshl_add_u32 v4, v2, 4, v4')
    a('v_lshlrev_b32 v5, 10, v1')
    a('v_lshl_add_u32 v5, v2, 4, v5')
    a('s_lshl_b32 s7, s5, 7')
    a('v_add_u32 v5, s7, v5')
    a('v_mul_u32_u24 v6, 192, v1')
    a('v_lshl_add_u32 v6, v2, 4, v6')
    a(f'v_add_u32 v6, {ASZ}, v6')
    a('v_lshrrev_b32 v1, 6, v0')
    a('v_lshrrev_b32 v7, 1, v1')
    a('v_and_b32 v8, 1, v1')
    a('v_and_b32 v9, 31, v0')
    a('v_bfe_u32 v10, v0, 5, 1')
    a('v_lshl_add_u32 v11, v7, 5, v9')
    a('v_mul_u32_u24 v11, 144, v11')
    a('v_lshl_add_u32 v11, v10, 4, v11')
    a('v_bfe_u32 v12, v0, 2, 2')
    a('v_lshl_add_u32 v12, v10, 3, v12')
    a('v_mul_u32_u24 v12, 192, v12')
    a('v_bfe_u32 v13, v0, 4, 1')
    a('v_lshlrev_b32 v13, 5, v13')
    a('v_lshl_add_u32 v13, v8, 6, v13')
    a('v_and_b32 v14, 3, v0')
    a('v_lshl_add_u32 v13, v14, 3, v13')
    a('v_add_u32 v12, v12, v13')
    a(f'v_add_u32 v12, {ASZ}, v12')
    for r in range(16): a(f'v_mov_b32 v{64+r}, 0')
    def gload2(sA, sB):
        for q in range(2):
            a(f'v_add_u32 v15, {32*3584*q}, v3')
            a(f'buffer_load_dwordx4 v[{16+4*q}:{19+4*q}], v15, s[8:11], {sA} offen')
        for q in range(2):
            a(f'v_add_u32 v15, {32*1024*q}, v5')
            a(f'buffer_load_dwordx4 v[{32+4*q}:{35+4*q}], v15, s[12:15], {sB} offen')
    def lwrite(buf):
        for q in range(2):
            a(f'ds_write_b128 v4, v[{16+4*q}:{19+4*q}] offset:{buf*STG + 32*144*q}')
        for q in range(2):
            a(f'ds_write_b128 v6, v[{32+4*q}:{35+4*q}] offset:{buf*STG + 32*192*q}')
    def compute(buf):
        for kk in range(4):
            a(f'ds_read_b128 v[48:51], v11 offset:{buf*STG + kk*32}')
            for u in range(2):
                a(f'ds_read_b64_tr_b16 v[{56+2*u}:{57+2*u}], v12 offset:{buf*STG + (kk*16+4*u)*192}')
            a('s_waitcnt lgkmcnt(0)')
            a('v_mfma_f32_32x32x16_bf16 v[64:79], v[56:59], v[48:51], v[64:79]')
    a('s_mov_b32 s30, 0')
    a('s_mov_b32 s31, 0')
    gload2('s30', 's31')
    a('s_waitcnt vmcnt(0)')
    lwrite(0)
    a('s_waitcnt lgkmcnt(0)')
    a('s_barrier')
    a('s_mov_b32 s32, 0')
    a.lab('F_loop')
    for half in range(2):
        a('s_add_u32 s30, s30, 128')
        a(f's_add_u32 s31, s31, {64*1024}')
        gload2('s30', 's31')
        compute(half)
        a('s_waitcnt vmcnt(0)')
        lwrite(1 - half)
        a('s_waitcnt lgkmcnt(0)')
        a('s_barrier')
    a('s_add_u32 s32, s32, 1')
    a('s_cmp_lt_u32 s32, 14')
    a('s_cbranch_scc1 F_loop')
    a('v_lshl_add_u32 v17, v7, 5, v9')
    a('s_lshl_b32 s6, s4, 6')
    a('v_add_u32 v17, s6, v17')
    a('v_lshlrev_b32 v16, 6, v8')
    a('v_lshl_add_u32 v16, v10, 3, v16')
    a('v_add_u32 v16, s7, v16')
    a('v_lshl_add_u32 v18, v17, 10, v16')
    a('v_lshlrev_b32 v19, 11, v16')
    a('v_lshl_add_u32 v19, v17, 1, v19')
    a(f'v_add_u32 v19, {WS_AT}, v19')
    for rq in range(4):
        a(f'buffer_load_dwordx2 v[{32+2*rq}:{33+2*rq}], v16, s[16:19], 0 offen offset:{16*rq}')
        a(f'buffer_load_dwordx2 v[{40+2*rq}:{41+2*rq}], v18, s[20:23], 0 offen offset:{16*rq}')
    for rq in range(4):
        for i in range(4):
            a(f'v_add_u32 v20, {(8*rq+i)*4096}, v19')
            a(f'buffer_load_ushort v{96+4*rq+i}, v20, s[8:11], 0 offen')
    a('s_waitcnt vmcnt(0)')
    a('s_nop 7')
    for rq in range(4):
        for p in range(2):
            y0, y1 = 64 + 4 * rq + 2 * p, 65 + 4 * rq + 2 * p
            b, x = 32 + 2 * rq + p, 40 + 2 * rq + p
            a0, a1 = 96 + 4 * rq + 2 * p, 97 + 4 * rq + 2 * p
            a(f'v_cvt_pk_bf16_f32 v20, v{y0}, v{y1}')
            a('v_lshlrev_b32 v21, 16, v20')
            a('v_and_b32 v22, 0xffff0000, v20')
            a(f'v_lshlrev_b32 v23, 16, v{b}')
            a(f'v_and_b32 v24, 0xffff0000, v{b}')
            a('v_add_f32 v21, v21, v23')
            a('v_add_f32 v22, v22, v24')
            a('v_cvt_pk_bf16_f32 v20, v21, v22')
            a('v_lshlrev_b32 v21, 16, v20')
            a('v_and_b32 v22, 0xffff0000, v20')
            a(f'v_lshlrev_b32 v23, 16, v{x}')
            a(f'v_and_b32 v24, 0xffff0000, v{x}')
            a(f'v_lshlrev_b32 v25, 16, v{a0}')
            a(f'v_lshlrev_b32 v26, 16, v{a1}')
            a('v_add_f32 v23, v23, v25')
            a('v_add_f32 v24, v24, v26')
            a('v_cvt_pk_bf16_f32 v20, v23, v24')
            a('v_lshlrev_b32 v23, 16, v20')
            a('v_and_b32 v24, 0xffff0000, v20')
            a('v_add_f32 v23, v23, v21')
            a('v_add_f32 v24, v24, v22')
            a(f'v_cvt_pk_bf16_f32 v{28+p}, v23, v24')
        a(f'buffer_store_dwordx2 v[28:29], v18, s[24:27], 0 offen offset:{16*rq}')
    a.lab('F_end')
    a('s_endpgm')
    return a.text()

def more_kernels():
    return [('mid_kernel', 480, 2 * (128 * 144 + 64 * 320), gen_mid(), 128),
            ('fin_kernel', 256, 2 * (64 * 144 + 64 * 192), gen_fin(), 128)]
```

```python
import sys
NAME = 'parallel_sum__ssm_conv_s4d__dense_activation_gelu__prompt'

WS_XN  = 0
WS_XNT = 2 << 20
WS_KR  = 4 << 20
WS_AT  = 6 << 20
WS_H   = 8 << 20
WS_SIZE = 16 << 20

class A:
    def __init__(s): s.l = []
    def __call__(s, t): s.l.append('    ' + t)
    def lab(s, t): s.l.append(t + ':')
    def raw(s, t): s.l.append(t)
    def text(s): return '\n'.join(s.l) + '\n'

def f32hex(x):
    import struct
    return '0x%08x' % struct.unpack('<I', struct.pack('<f', x))[0]

def srd(a, d, b, size):
    a(f's_mov_b32 s{d}, s{b}')
    a(f's_and_b32 s{d+1}, s{b+1}, 0xffff')
    a(f's_mov_b32 s{d+2}, {size}')
    a(f's_mov_b32 s{d+3}, 0x00020000')

def kdesc(name, vgpr, sgpr=100):
    acc = (vgpr + 3) // 4 * 4
    return f'''.p2align 6
.amdhsa_kernel {name}
  .amdhsa_next_free_vgpr {vgpr}
  .amdhsa_next_free_sgpr {sgpr}
  .amdhsa_accum_offset {acc}
  .amdhsa_group_segment_fixed_size 0
  .amdhsa_kernarg_size 120
  .amdhsa_user_sgpr_count 2
  .amdhsa_user_sgpr_kernarg_segment_ptr 1
  .amdhsa_system_sgpr_workgroup_id_x 1
.end_amdhsa_kernel
'''

def khead(name):
    return f'''.globl {name}
.p2align 8
.type {name},@function
{name}:
'''

LOG2E = 1.4426950408889634
import struct
def split_f32(x):
    hi = struct.unpack('<f', struct.pack('<f', x))[0]
    lo = x - hi
    return hi, lo
L2E_HI, L2E_LO = split_f32(LOG2E)
LN2 = 0.6931471805599453

def bf16r(a, dst, src, ):
    a(f'v_cvt_pk_bf16_f32 {dst}, {src}, {src}')
    a(f'v_lshlrev_b32 {dst}, 16, {dst}')

def exp_acc(a, dst, x, t, r, sL2EH, sL2EL, sLN2):
    a(f'v_mul_f32 {t}, {sL2EH}, {x}')
    a(f'v_fma_f32 {r}, {x}, {sL2EH}, -{t}')
    a(f'v_fma_f32 {r}, {x}, {sL2EL}, {r}')
    a(f'v_exp_f32 {dst}, {t}')
    a(f'v_mul_f32 {r}, {sLN2}, {r}')
    a(f'v_fma_f32 {dst}, {dst}, {r}, {dst}')

def gen_prep():
    a = A()
    N_LN = 64
    a(f's_cmp_ge_u32 s2, {N_LN + 512}')
    a('s_cbranch_scc1 P_end')
    a('s_load_dwordx16 s[36:51], s[0:1], 0')
    a('s_load_dwordx2 s[52:53], s[0:1], 112')
    a('s_waitcnt lgkmcnt(0)')
    srd(a, 8, 52, WS_SIZE)
    a(f's_cmp_ge_u32 s2, {N_LN}')
    a('s_cbranch_scc1 P_kgen')
    srd(a, 4, 36, 2048 * 512 * 2)
    a('v_lshrrev_b32 v1, 3, v0')
    a('v_and_b32 v2, 7, v0')
    a('s_lshl_b32 s12, s2, 15')
    a('v_lshlrev_b32 v3, 10, v1')
    a('v_lshl_add_u32 v3, v2, 4, v3')
    a('v_add_u32 v3, s12, v3')
    for q in range(8):
        a(f'buffer_load_dwordx4 v[{16+4*q}:{19+4*q}], v3, s[4:7], 0 offen offset:{128*q}')
    a('s_waitcnt vmcnt(0)')
    for i in range(32):
        a(f'v_lshlrev_b32 v{64+2*i}, 16, v{16+i}')
        a(f'v_and_b32 v{65+2*i}, 0xffff0000, v{16+i}')
    a('v_add_f32 v4, v64, v65')
    for i in range(2, 64, 2):
        a(f'v_add_f32 v5, v{64+i}, v{65+i}')
        a('v_add_f32 v4, v4, v5')
    def red8(reg):
        for off in (0x041F, 0x081F, 0x101F):
            a(f'ds_swizzle_b32 v5, {reg} offset:{off}')
            a('s_waitcnt lgkmcnt(0)')
            a(f'v_add_f32 {reg}, {reg}, v5')
    red8('v4')
    a(f'v_mul_f32 v4, {f32hex(1/512)}, v4')
    a('v_sub_f32 v5, v64, v4')
    a('v_mul_f32 v6, v5, v5')
    for i in range(1, 64):
        a(f'v_sub_f32 v5, v{64+i}, v4')
        a('v_fmac_f32 v6, v5, v5')
    red8('v6')
    a(f'v_mul_f32 v6, {f32hex(1/512)}, v6')
    bf16r(a, 'v4', 'v4')
    bf16r(a, 'v6', 'v6')
    a(f'v_add_f32 v6, {f32hex(1e-5)}, v6')
    bf16r(a, 'v6', 'v6')
    a('v_sqrt_f32 v6, v6')
    a('s_nop 1')
    bf16r(a, 'v6', 'v6')
    a('v_rcp_f32 v7, v6')
    a('s_nop 1')
    for i in range(32):
        x0, x1 = f'v{64+2*i}', f'v{65+2*i}'
        a(f'v_sub_f32 {x0}, {x0}, v4')
        a(f'v_sub_f32 {x1}, {x1}, v4')
        a(f'v_cvt_pk_bf16_f32 v8, {x0}, {x1}')
        a(f'v_lshlrev_b32 {x0}, 16, v8')
        a(f'v_and_b32 {x1}, 0xffff0000, v8')
        a(f'v_mul_f32 v8, {x0}, v7')
        a(f'v_mul_f32 v9, {x1}, v7')
        a(f'v_fma_f32 {x0}, -v8, v6, {x0}')
        a(f'v_fma_f32 {x1}, -v9, v6, {x1}')
        a(f'v_fma_f32 v8, {x0}, v7, v8')
        a(f'v_fma_f32 v9, {x1}, v7, v9')
        a(f'v_cvt_pk_bf16_f32 v{16+i}, v8, v9')
    for q in range(8):
        a(f'buffer_store_dwordx4 v[{16+4*q}:{19+4*q}], v3, s[8:11], 0 offen offset:{128*q}')
    a('v_mul_u32_u24 v10, 1040, v1')
    a('v_lshl_add_u32 v10, v2, 4, v10')
    for q in range(8):
        a(f'ds_write_b128 v10, v[{16+4*q}:{19+4*q}] offset:{128*q}')
    a('s_waitcnt lgkmcnt(0)')
    a('s_barrier')
    a('v_lshlrev_b32 v10, 2, v0')
    for r in range(32):
        a(f'ds_read_b32 v{64+r}, v10 offset:{1040*r}')
    a('s_mov_b32 s14, 0x05040100')
    a('s_mov_b32 s15, 0x07060302')
    a('s_waitcnt lgkmcnt(0)')
    for k in range(16):
        a(f'v_perm_b32 v{16+k}, v{65+2*k}, v{64+2*k}, s14')
        a(f'v_perm_b32 v{32+k}, v{65+2*k}, v{64+2*k}, s15')
    a('s_lshl_b32 s12, s2, 6')
    a(f's_add_u32 s12, s12, {WS_XNT}')
    a('v_lshlrev_b32 v10, 13, v0')
    a('v_add_u32 v10, s12, v10')
    a('v_add_u32 v11, 4096, v10')
    for q in range(4):
        a(f'buffer_store_dwordx4 v[{16+4*q}:{19+4*q}], v10, s[8:11], 0 offen offset:{16*q}')
        a(f'buffer_store_dwordx4 v[{32+4*q}:{35+4*q}], v11, s[8:11], 0 offen offset:{16*q}')
    a('s_endpgm')
    a.lab('P_kgen')
    a(f's_sub_u32 s3, s2, {N_LN}')
    srd(a, 12, 38, 512 * 128 * 2)
    srd(a, 16, 40, 512 * 128 * 2)
    srd(a, 20, 42, 512 * 128 * 2)
    srd(a, 24, 44, 512 * 128 * 2)
    srd(a, 28, 46, 512 * 2)
    a('v_and_b32 v1, 127, v0')
    a('v_lshrrev_b32 v2, 7, v0')
    a('s_lshl_b32 s4, s3, 8')
    a('v_lshl_add_u32 v3, v1, 1, s4')
    a('s_lshl_b32 s5, s3, 1')
    a('v_mov_b32 v4, s5')
    a('buffer_load_ushort v5, v3, s[12:15], 0 offen')
    a('buffer_load_ushort v6, v3, s[16:19], 0 offen')
    a('buffer_load_ushort v7, v3, s[20:23], 0 offen')
    a('buffer_load_ushort v8, v3, s[24:27], 0 offen')
    a('buffer_load_ushort v9, v4, s[28:31], 0 offen')
    a(f's_mov_b32 s32, {f32hex(L2E_HI)}')
    a(f's_mov_b32 s33, {f32hex(L2E_LO)}')
    a(f's_mov_b32 s34, {f32hex(LN2)}')
    a(f's_mov_b32 s35, {f32hex(1/(2*3.141592653589793))}')
    a('s_waitcnt vmcnt(0)')
    for r in (5, 6, 7, 8, 9):
        a(f'v_lshlrev_b32 v{r}, 16, v{r}')
    exp_acc(a, 'v10', 'v9', 'v11', 'v12', 's32', 's33', 's34')
    bf16r(a, 'v10', 'v10')
    exp_acc(a, 'v13', 'v5', 'v11', 'v12', 's32', 's33', 's34')
    bf16r(a, 'v13', 'v13')
    a('v_mul_f32 v13, v13, v10')
    a('v_sub_f32 v13, 0, v13')
    a('v_mul_f32 v14, v6, v10')
    a('v_mul_f32 v15, v7, v10')
    a('v_mul_f32 v16, v8, v10')
    a('v_lshrrev_b32 v17, 3, v1')
    a('v_lshlrev_b32 v17, 10, v17')
    a('v_and_b32 v18, 1, v1')
    a('v_lshl_add_u32 v17, v18, 9, v17')
    a('v_bfe_u32 v18, v1, 1, 2')
    a('v_lshl_add_u32 v17, v18, 2, v17')
    def cexp(dr, di, p, t0, t1):
        a(f'v_mul_f32 {t0}, v13, {p}')
        a(f'v_mul_f32 {t0}, s32, {t0}')
        a(f'v_exp_f32 {t0}, {t0}')
        a(f'v_mul_f32 {t1}, v14, {p}')
        a(f'v_mul_f32 {t1}, s35, {t1}')
        a(f'v_fract_f32 {t1}, {t1}')
        a(f'v_cos_f32 {dr}, {t1}')
        a(f'v_sin_f32 {di}, {t1}')
        a('s_nop 1')
        a(f'v_mul_f32 {dr}, {dr}, {t0}')
        a(f'v_mul_f32 {di}, {di}, {t0}')
    def cmul(zr, zi, wr, wi, t0, t1):
        a(f'v_mul_f32 {t0}, {zi}, {wi}')
        a(f'v_mul_f32 {t1}, {zi}, {wr}')
        a(f'v_fma_f32 {t0}, {zr}, {wr}, -{t0}')
        a(f'v_fma_f32 {zi}, {zr}, {wi}, {t1}')
        a(f'v_mov_b32 {zr}, {t0}')
    for it in range(2):
        a(f'v_lshl_add_u32 v20, v2, 1, {it}')
        a('v_lshlrev_b32 v21, v20, 1')
        a('v_cvt_f32_u32 v22, v21')
        a('v_mul_f32 v23, 16.0, v22')
        a('v_mul_f32 v24, 0x43000000, v22')
        a('v_cmp_eq_u32 vcc, 0, v20')
        a('s_nop 1')
        a('v_cndmask_b32 v24, v24, 0, vcc')
        a('v_lshl_add_u32 v19, v20, 15, v17')
        cexp('v25', 'v26', 'v22', 'v30', 'v31')
        cexp('v27', 'v28', 'v23', 'v30', 'v31')
        cexp('v32', 'v33', 'v24', 'v30', 'v31')
        cmul('v32', 'v33', 'v15', 'v16', 'v30', 'v31')
        for i in range(16):
            a(f'ds_write_b32 v19, v32 offset:{16*i}')
            a('v_sub_f32 v34, 0, v33')
            a(f'ds_write_b32 v19, v34 offset:{256+16*i}')
            if i < 15: cmul('v32', 'v33', 'v27', 'v28', 'v30', 'v31')
        a('v_mov_b32 v32, 1.0')
        a('v_mov_b32 v33, 0')
        for j in range(16):
            a(f'ds_write_b32 v19, v32 offset:{16384+16*j}')
            a(f'ds_write_b32 v19, v33 offset:{16384+256+16*j}')
            if j < 15: cmul('v32', 'v33', 'v25', 'v26', 'v30', 'v31')
    a('s_waitcnt lgkmcnt(0)')
    a('s_barrier')
    a('v_lshrrev_b32 v20, 6, v0')
    a('v_and_b32 v21, 63, v0')
    a('v_lshlrev_b32 v22, 15, v20')
    a('v_lshl_add_u32 v22, v21, 4, v22')
    for r in range(8): a(f'v_mov_b32 v{40+r}, 0')
    for S in range(16):
        a(f'ds_read_b128 v[48:51], v22 offset:{1024*S}')
        a(f'ds_read_b128 v[52:55], v22 offset:{16384+1024*S}')
        a('s_waitcnt lgkmcnt(0)')
        for q in range(4):
            acc = 40 + 4 * (q & 1)
            a(f'v_mfma_f32_16x16x4_f32 v[{acc}:{acc+3}], v{48+q}, v{52+q}, v[{acc}:{acc+3}]')
    a('s_nop 15')
    a('s_nop 15')
    for r in range(4):
        a(f'v_add_f32 v{40+r}, v{40+r}, v{44+r}')
        a(f'v_add_f32 v{40+r}, v{40+r}, v{40+r}')
    a('v_lshrrev_b32 v23, 4, v21')
    a('v_lshlrev_b32 v23, 8, v23')
    a('v_and_b32 v24, 15, v21')
    a('v_lshl_add_u32 v23, v24, 2, v23')
    a('v_lshl_add_u32 v23, v20, 10, v23')
    a('v_add_u32 v23, 131072, v23')
    for r in range(4):
        a(f'ds_write_b32 v23, v{40+r} offset:{64*r}')
    a('s_waitcnt lgkmcnt(0)')
    a('s_barrier')
    a('v_lshlrev_b32 v23, 3, v0')
    for e in range(8):
        a(f'v_sub_u32 v24, {2047 - e}, v23')
        a('v_cvt_f32_u32 v25, v24')
        a('v_bfe_u32 v26, v25, 16, 1')
        a('v_add3_u32 v25, v25, v26, 0x7fff') if False else None
        a('v_add_u32 v25, v25, v26')
        a('v_add_u32 v25, 0x7fff, v25')
        a('v_and_b32 v25, 0xffff0000, v25')
        a('v_lshrrev_b32 v26, 23, v25')
        a('v_cvt_u32_f32 v27, v25')
        a('v_subrev_u32 v26, 134, v26')
        a('v_max_i32 v26, 0, v26')
        a('v_min_i32 v26, 3, v26')
        a('v_lshrrev_b32 v27, v26, v27')
        a('v_cmp_eq_u32 vcc, 0, v26')
        a('v_subrev_u32 v28, 128, v27')
        a('s_nop 0')
        a('v_cndmask_b32 v27, v28, v27, vcc')
        a('v_lshl_add_u32 v27, v26, 8, v27')
        a('v_lshlrev_b32 v27, 2, v27')
        a(f'ds_read_b32 v{48+e}, v27 offset:131072' if False else f'v_add_u32 v27, 131072, v27')
        a(f'ds_read_b32 v{48+e}, v27')
    a('s_waitcnt lgkmcnt(0)')
    for e in range(4):
        a(f'v_cvt_pk_bf16_f32 v{56+e}, v{48+2*e}, v{49+2*e}')
    a('s_lshl_b32 s4, s3, 12')
    a(f's_add_u32 s4, s4, {WS_KR}')
    a('v_lshl_add_u32 v23, v0, 4, s4')
    a('buffer_store_dwordx4 v[56:59], v23, s[8:11], 0 offen')
    a.lab('P_end')
    a('s_endpgm')
    return a.text()

def build(kernels):
    hdr = open('cdna_kernels/' + NAME + '.s.ref').read().split('; Override')[0]
    out = hdr
    for (nm, grid, lds, body, vg) in kernels:
        out += f'; @launch kernel={nm} grid=({grid},1,1) block=(256,1,1) lds={lds}\n'
    out += '.amdgcn_target "amdgcn-amd-amdhsa--gfx950"\n.text\n'
    for (nm, grid, lds, body, vg) in kernels:
        out += khead(nm) + body
    out += '.section .rodata,"a"\n'
    for (nm, grid, lds, body, vg) in kernels:
        out += kdesc(nm, vg)
    return out

if __name__ == '__main__':
    ks = [('prep_kernel', 576, 135168, gen_prep(), 128)]
    try:
        from gen2 import more_kernels
        ks += more_kernels()
    except ImportError:
        pass
    open(sys.argv[1] if len(sys.argv) > 1 else 'k.s', 'w').write(build(ks))
```

```python
from gen import A, srd, f32hex, bf16r, WS_XN, WS_XNT, WS_KR, WS_AT, WS_H, WS_SIZE, LOG2E

GC1 = -2 * 0.7978845608028654 * LOG2E
GC2 = GC1 * 0.044715

def gen_mid():
    a = A()
    a('s_cmp_ge_u32 s2, 480')
    a('s_cbranch_scc1 M_end')
    a('s_load_dwordx16 s[36:51], s[0:1], 0')
    a('s_load_dwordx8 s[52:59], s[0:1], 64')
    a('s_load_dwordx2 s[60:61], s[0:1], 112')
    a('s_waitcnt lgkmcnt(0)')
    srd(a, 8, 60, WS_SIZE)
    import os
    a('s_cmp_ge_u32 s2, 256')
    a('s_cbranch_scc1 ' + ('M_end' if os.environ.get('SKIP')=='gemm' else 'M_gemm'))
    if os.environ.get('SKIP')=='conv': a('s_branch M_end')
    UB = 4352
    srd(a, 12, 48, 512 * 2)
    a('v_lshrrev_b32 v1, 7, v0')
    a('v_and_b32 v2, 127, v0')
    a('s_lshl_b32 s3, s2, 13')
    a('v_lshlrev_b32 v3, 12, v1')
    a('v_lshl_add_u32 v3, v2, 4, v3')
    a('v_add_u32 v3, s3, v3')
    a(f'v_add_u32 v4, {WS_KR}, v3')
    a('s_lshl_b32 s4, s2, 9')
    a('v_lshl_add_u32 v4, v1, 8, v4')
    a('v_add_u32 v4, s4, v4')
    a(f'v_add_u32 v5, {WS_XNT}, v3')
    a('buffer_load_dwordx4 v[16:19], v4, s[8:11], 0 offen')
    a('buffer_load_dwordx4 v[20:23], v4, s[8:11], 0 offen offset:2048')
    a('buffer_load_dwordx4 v[24:27], v5, s[8:11], 0 offen')
    a('buffer_load_dwordx4 v[28:31], v5, s[8:11], 0 offen offset:2048')
    a('v_lshlrev_b32 v6, 14, v1')
    a('v_lshl_add_u32 v7, v2, 4, v6')
    a('v_lshrrev_b32 v8, 2, v2')
    a('v_mul_u32_u24 v8, 80, v8')
    a('v_and_b32 v9, 3, v2')
    a('v_lshl_add_u32 v8, v9, 4, v8')
    a('v_add_u32 v8, v6, v8')
    for r in range(32, 36): a(f'v_mov_b32 v{r}, 0')
    a(f'ds_write_b128 v7, v[32:35] offset:{UB}')
    a('v_cmp_gt_u32 vcc, 32, v2')
    a('s_and_saveexec_b64 s[16:17], vcc')
    a(f'ds_write_b128 v7, v[32:35] offset:{UB + 2048}')
    a('s_mov_b64 exec, s[16:17]')
    a('v_cmp_gt_u32 vcc, 8, v2')
    a('s_and_saveexec_b64 s[16:17], vcc')
    a(f'ds_write_b128 v7, v[32:35] offset:4096')
    a('s_mov_b64 exec, s[16:17]')
    a('s_waitcnt vmcnt(0)')
    a('ds_write_b128 v7, v[16:19]')
    a('ds_write_b128 v7, v[20:23] offset:2048')
    a(f'ds_write_b128 v8, v[24:27] offset:{UB + 2560}')
    a(f'ds_write_b128 v8, v[28:31] offset:{UB + 2560 + 2560}')
    a('s_waitcnt lgkmcnt(0)')
    a('s_barrier')
    a('v_lshrrev_b32 v1, 6, v0')
    a('v_lshrrev_b32 v2, 1, v1')
    a('v_and_b32 v3, 1, v1')
    a('v_and_b32 v4, 31, v0')
    a('v_bfe_u32 v5, v0, 5, 1')
    a('v_lshlrev_b32 v6, 14, v2')
    a('v_lshlrev_b32 v7, 3, v5')
    a('v_sub_u32 v7, v7, v4')
    a(f'v_add_u32 v7, {2047 - 32*63}, v7')
    a('v_lshl_add_u32 v7, v7, 1, v6')
    a('v_lshl_add_u32 v8, v3, 5, v4')
    a('v_mul_u32_u24 v9, 80, v8')
    a('v_lshl_add_u32 v9, v5, 4, v9')
    a('v_add_u32 v9, v6, v9')
    a(f'v_add_u32 v9, {UB - 31*80}, v9')
    for r in range(16): a(f'v_mov_b32 v{64+r}, 0')
    a('v_readfirstlane_b32 s4, v3')
    a('s_cmp_eq_u32 s4, 0')
    a('s_cbranch_scc1 M_nt0')
    def conv_path(kmax):
        seq = [(k, h) for k in range(kmax, -1, -1) for h in (0, 1)]
        def rd(idx):
            k, h = seq[idx]
            st = 32 + 8 * (idx % 4)
            a(f'ds_read_b128 v[{st}:{st+3}], v7 offset:{64*(63-k)+32*h}')
            a(f'ds_read_b128 v[{st+4}:{st+7}], v9 offset:{80*(63-k)+32*h}')
        rd(0); rd(1); rd(2)
        for idx in range(len(seq)):
            st = 32 + 8 * (idx % 4)
            rem = min(2, len(seq) - 1 - idx)
            a(f's_waitcnt lgkmcnt({2*rem})')
            a(f'v_mfma_f32_32x32x16_bf16 v[64:79], v[{st}:{st+3}], v[{st+4}:{st+7}], v[64:79]')
            if idx + 3 < len(seq): rd(idx + 3)
    conv_path(63)
    a('s_branch M_convepi')
    a.lab('M_nt0')
    conv_path(31)
    a.lab('M_convepi')
    a('s_lshl_b32 s4, s2, 1')
    a('v_add_u32 v10, s4, v2')
    a('v_lshlrev_b32 v11, 1, v10')
    a('buffer_load_ushort v12, v11, s[12:15], 0 offen')
    a('v_mul_u32_u24 v13, 80, v8')
    a('v_lshl_add_u32 v13, v5, 3, v13')
    a('v_add_u32 v13, v6, v13')
    for rq in range(4):
        a(f'ds_read_b64 v[{32+2*rq}:{33+2*rq}], v13 offset:{UB + 2560 + 16*rq}')
    a('v_lshlrev_b32 v14, 12, v10')
    a('v_lshl_add_u32 v14, v8, 6, v14')
    a('v_lshl_add_u32 v14, v5, 3, v14')
    a(f'v_add_u32 v14, {WS_AT}, v14')
    a('s_waitcnt vmcnt(0) lgkmcnt(0)')
    a('s_nop 7')
    a('v_lshlrev_b32 v12, 16, v12')
    for rq in range(4):
        for p in range(2):
            u = 32 + 2 * rq + p
            y0, y1 = 64 + 4 * rq + 2 * p, 65 + 4 * rq + 2 * p
            a(f'v_lshlrev_b32 v40, 16, v{u}')
            a(f'v_and_b32 v41, 0xffff0000, v{u}')
            a('v_mul_f32 v40, v40, v12')
            a('v_mul_f32 v41, v41, v12')
            a('v_cvt_pk_bf16_f32 v42, v40, v41')
            a('v_lshlrev_b32 v40, 16, v42')
            a('v_and_b32 v41, 0xffff0000, v42')
            a(f'v_cvt_pk_bf16_f32 v42, v{y0}, v{y1}')
            a('v_lshlrev_b32 v43, 16, v42')
            a('v_and_b32 v44, 0xffff0000, v42')
            a('v_add_f32 v40, v40, v43')
            a('v_add_f32 v41, v41, v44')
            a(f'v_cvt_pk_bf16_f32 v{48+2*rq+p}, v40, v41')
        a(f'buffer_store_dwordx2 v[{48+2*rq}:{49+2*rq}], v14, s[8:11], 0 offen offset:{16*rq}')
    a('s_endpgm')
    a.lab('M_gemm')
    srd(a, 12, 52, 512 * 1792 * 2)
    srd(a, 16, 54, 1792 * 2)
    a('s_sub_u32 s3, s2, 256')
    a('s_and_b32 s4, s3, 7')
    a('s_lshl_b32 s4, s4, 1')
    a('s_bfe_u32 s5, s3, 0x10003')
    a('s_add_u32 s4, s4, s5')
    a('s_lshr_b32 s5, s3, 4')
    ASZ, BSZ = 128 * 144, 64 * 320
    STG = ASZ + BSZ
    a('v_lshrrev_b32 v1, 3, v0')
    a('v_and_b32 v2, 7, v0')
    a('s_lshl_b32 s6, s4, 17')
    a('v_lshlrev_b32 v3, 10, v1')
    a('v_lshl_add_u32 v3, v2, 4, v3')
    a('v_add_u32 v3, s6, v3')
    a('v_mul_u32_u24 v4, 144, v1')
    a('v_lshl_add_u32 v4, v2, 4, v4')
    a('v_lshrrev_b32 v1, 4, v0')
    a('v_and_b32 v2, 15, v0')
    a('v_mul_u32_u24 v5, 3584, v1')
    a('v_lshl_add_u32 v5, v2, 4, v5')
    a('s_lshl_b32 s7, s5, 8')
    a('v_add_u32 v5, s7, v5')
    a('v_mul_u32_u24 v6, 320, v1')
    a('v_lshl_add_u32 v6, v2, 4, v6')
    a(f'v_add_u32 v6, {ASZ}, v6')
    a('v_lshrrev_b32 v1, 6, v0')
    a('v_lshrrev_b32 v7, 1, v1')
    a('v_and_b32 v8, 1, v1')
    a('v_and_b32 v9, 31, v0')
    a('v_bfe_u32 v10, v0, 5, 1')
    a('v_lshl_add_u32 v11, v7, 6, v9')
    a('v_mul_u32_u24 v11, 144, v11')
    a('v_lshl_add_u32 v11, v10, 4, v11')
    a('v_bfe_u32 v12, v0, 2, 2')
    a('v_lshl_add_u32 v12, v10, 3, v12')
    a('v_mul_u32_u24 v12, 320, v12')
    a('v_bfe_u32 v13, v0, 4, 1')
    a('v_lshlrev_b32 v13, 5, v13')
    a('v_lshl_add_u32 v13, v8, 7, v13')
    a('v_and_b32 v14, 3, v0')
    a('v_lshl_add_u32 v13, v14, 3, v13')
    a('v_add_u32 v12, v12, v13')
    a(f'v_add_u32 v12, {ASZ}, v12')
    for r in range(64): a(f'v_mov_b32 v{64+r}, 0')
    def gload(kt):
        for q in range(4):
            a(f'buffer_load_dwordx4 v[{16+4*q}:{19+4*q}], v3, s[8:11], s20 offen offset:{0}' if False else
              f'buffer_load_dwordx4 v[{16+4*q}:{19+4*q}], v15, s[8:11], 0 offen')
            if q < 3: a('v_add_u32 v15, 32768, v15')
    def gload2(sA, sB):
        for q in range(4):
            a(f'v_add_u32 v15, {32768*q}, v3')
            a(f'buffer_load_dwordx4 v[{16+4*q}:{19+4*q}], v15, s[8:11], {sA} offen')
        for q in range(4):
            a(f'v_add_u32 v15, {16*3584*q}, v5')
            a(f'buffer_load_dwordx4 v[{32+4*q}:{35+4*q}], v15, s[12:15], {sB} offen')
    def lwrite(buf):
        for q in range(4):
            a(f'ds_write_b128 v4, v[{16+4*q}:{19+4*q}] offset:{buf*STG + 32*144*q}')
        for q in range(4):
            a(f'ds_write_b128 v6, v[{32+4*q}:{35+4*q}] offset:{buf*STG + 16*320*q}')
    def compute(buf):
        for kk in range(4):
            for mt in range(2):
                a(f'ds_read_b128 v[{48+4*mt}:{51+4*mt}], v11 offset:{buf*STG + mt*32*144 + kk*32}')
            for nt in range(2):
                for u in range(2):
                    a(f'ds_read_b64_tr_b16 v[{56+4*nt+2*u}:{57+4*nt+2*u}], v12 offset:{buf*STG + (kk*16+4*u)*320 + nt*64}')
            a('s_waitcnt lgkmcnt(0)')
            for mt in range(2):
                for nt in range(2):
                    acc = 64 + 16 * (2 * mt + nt)
                    a(f'v_mfma_f32_32x32x16_bf16 v[{acc}:{acc+15}], v[{56+4*nt}:{59+4*nt}], v[{48+4*mt}:{51+4*mt}], v[{acc}:{acc+15}]')
    a('s_mov_b32 s20, 0')
    a('s_mov_b32 s21, 0')
    gload2('s20', 's21')
    a('s_waitcnt vmcnt(0)')
    lwrite(0)
    a('s_waitcnt lgkmcnt(0)')
    a('s_barrier')
    for kt in range(8):
        if kt < 7:
            a(f's_mov_b32 s20, {(kt+1)*128}')
            a(f's_mov_b32 s21, {(kt+1)*64*3584}')
            gload2('s20', 's21')
        compute(kt & 1)
        if kt < 7:
            a('s_waitcnt vmcnt(0)')
            lwrite((kt + 1) & 1)
            a('s_waitcnt lgkmcnt(0)')
            a('s_barrier')
    a(f's_mov_b32 s22, {f32hex(GC1)}')
    a(f's_mov_b32 s23, {f32hex(GC2)}')
    a('v_lshlrev_b32 v16, 7, v8')
    a('v_lshl_add_u32 v16, v10, 3, v16')
    a('v_add_u32 v16, s7, v16')
    for nt in range(2):
        for rq in range(4):
            a(f'buffer_load_dwordx2 v[{32+8*nt+2*rq}:{33+8*nt+2*rq}], v16, s[16:19], 0 offen offset:{64*nt+16*rq}')
    a('v_lshl_add_u32 v17, v7, 6, v9')
    a('s_lshl_b32 s6, s4, 7')
    a('v_add_u32 v17, s6, v17')
    a('v_mul_u32_u24 v17, 3584, v17')
    a('v_add_u32 v17, v17, v16')
    a(f'v_add_u32 v17, {WS_H}, v17')
    a(f'v_add_u32 v18, {32*3584}, v17')
    a('s_waitcnt vmcnt(0)')
    a('s_nop 7')
    for mt in range(2):
        for nt in range(2):
            acc = 64 + 16 * (2 * mt + nt)
            for rq in range(4):
                for p in range(2):
                    b = 32 + 8 * nt + 2 * rq + p
                    y0, y1 = acc + 4 * rq + 2 * p, acc + 4 * rq + 2 * p + 1
                    a(f'v_cvt_pk_bf16_f32 v20, v{y0}, v{y1}')
                    a('v_lshlrev_b32 v21, 16, v20')
                    a('v_and_b32 v22, 0xffff0000, v20')
                    a(f'v_lshlrev_b32 v23, 16, v{b}')
                    a(f'v_and_b32 v24, 0xffff0000, v{b}')
                    a('v_add_f32 v21, v21, v23')
                    a('v_add_f32 v22, v22, v24')
                    a('v_cvt_pk_bf16_f32 v20, v21, v22')
                    a('v_lshlrev_b32 v21, 16, v20')
                    a('v_and_b32 v22, 0xffff0000, v20')
                    for h, t in (('v21', 'v23'), ('v22', 'v24')):
                        a(f'v_mul_f32 {t}, {h}, {h}')
                        a(f'v_mov_b32 v25, s22')
                        a(f'v_fma_f32 {t}, {t}, s23, v25')
                        a(f'v_mul_f32 {t}, {t}, {h}')
                        a(f'v_exp_f32 {t}, {t}')
                        a('s_nop 0')
                        a(f'v_add_f32 {t}, 1.0, {t}')
                        a(f'v_rcp_f32 {t}, {t}')
                        a('s_nop 0')
                        a(f'v_mul_f32 {h}, {h}, {t}')
                    a(f'v_cvt_pk_bf16_f32 v{26+p}, v21, v22')
                dst = 'v17' if mt == 0 else 'v18'
                a(f'buffer_store_dwordx2 v[26:27], {dst}, s[8:11], 0 offen offset:{64*nt+16*rq}')
    a.lab('M_end')
    a('s_endpgm')
    return a.text()

def gen_fin():
    a = A()
    a('s_cmp_ge_u32 s2, 256')
    a('s_cbranch_scc1 F_end')
    a('s_load_dwordx2 s[36:37], s[0:1], 0')
    a('s_load_dwordx8 s[52:59], s[0:1], 64')
    a('s_load_dwordx4 s[60:63], s[0:1], 96')
    a('s_load_dwordx2 s[64:65], s[0:1], 112')
    a('s_waitcnt lgkmcnt(0)')
    srd(a, 8, 64, WS_SIZE)
    srd(a, 12, 56, 1792 * 512 * 2)
    srd(a, 16, 58, 512 * 2)
    srd(a, 20, 36, 2048 * 512 * 2)
    srd(a, 24, 60, 2048 * 512 * 2)
    a('s_lshr_b32 s4, s2, 3')
    a('s_and_b32 s5, s2, 7')
    ASZ, BSZ = 64 * 144, 64 * 192
    STG = ASZ + BSZ
    a('v_lshrrev_b32 v1, 3, v0')
    a('v_and_b32 v2, 7, v0')
    a(f's_mul_i32 s6, s4, {64*3584}')
    a(f's_add_u32 s6, s6, {WS_H}')
    a('v_mul_u32_u24 v3, 3584, v1')
    a('v_lshl_add_u32 v3, v2, 4, v3')
    a('v_add_u32 v3, s6, v3')
    a('v_mul_u32_u24 v4, 144, v1')
    a('v_lshl_add_u32 v4, v2, 4, v4')
    a('v_lshlrev_b32 v5, 10, v1')
    a('v_lshl_add_u32 v5, v2, 4, v5')
    a('s_lshl_b32 s7, s5, 7')
    a('v_add_u32 v5, s7, v5')
    a('v_mul_u32_u24 v6, 192, v1')
    a('v_lshl_add_u32 v6, v2, 4, v6')
    a(f'v_add_u32 v6, {ASZ}, v6')
    a('v_lshrrev_b32 v1, 6, v0')
    a('v_lshrrev_b32 v7, 1, v1')
    a('v_and_b32 v8, 1, v1')
    a('v_and_b32 v9, 31, v0')
    a('v_bfe_u32 v10, v0, 5, 1')
    a('v_lshl_add_u32 v11, v7, 5, v9')
    a('v_mul_u32_u24 v11, 144, v11')
    a('v_lshl_add_u32 v11, v10, 4, v11')
    a('v_bfe_u32 v12, v0, 2, 2')
    a('v_lshl_add_u32 v12, v10, 3, v12')
    a('v_mul_u32_u24 v12, 192, v12')
    a('v_bfe_u32 v13, v0, 4, 1')
    a('v_lshlrev_b32 v13, 5, v13')
    a('v_lshl_add_u32 v13, v8, 6, v13')
    a('v_and_b32 v14, 3, v0')
    a('v_lshl_add_u32 v13, v14, 3, v13')
    a('v_add_u32 v12, v12, v13')
    a(f'v_add_u32 v12, {ASZ}, v12')
    for r in range(16): a(f'v_mov_b32 v{64+r}, 0')
    def gload2(sA, sB):
        for q in range(2):
            a(f'v_add_u32 v15, {32*3584*q}, v3')
            a(f'buffer_load_dwordx4 v[{16+4*q}:{19+4*q}], v15, s[8:11], {sA} offen')
        for q in range(2):
            a(f'v_add_u32 v15, {32*1024*q}, v5')
            a(f'buffer_load_dwordx4 v[{32+4*q}:{35+4*q}], v15, s[12:15], {sB} offen')
    def lwrite(buf):
        for q in range(2):
            a(f'ds_write_b128 v4, v[{16+4*q}:{19+4*q}] offset:{buf*STG + 32*144*q}')
        for q in range(2):
            a(f'ds_write_b128 v6, v[{32+4*q}:{35+4*q}] offset:{buf*STG + 32*192*q}')
    def compute(buf):
        for kk in range(4):
            a(f'ds_read_b128 v[48:51], v11 offset:{buf*STG + kk*32}')
            for u in range(2):
                a(f'ds_read_b64_tr_b16 v[{56+2*u}:{57+2*u}], v12 offset:{buf*STG + (kk*16+4*u)*192}')
            a('s_waitcnt lgkmcnt(0)')
            a('v_mfma_f32_32x32x16_bf16 v[64:79], v[56:59], v[48:51], v[64:79]')
    a('s_mov_b32 s30, 0')
    a('s_mov_b32 s31, 0')
    gload2('s30', 's31')
    a('s_waitcnt vmcnt(0)')
    lwrite(0)
    a('s_waitcnt lgkmcnt(0)')
    a('s_barrier')
    a('s_mov_b32 s32, 0')
    a.lab('F_loop')
    for half in range(2):
        a('s_add_u32 s30, s30, 128')
        a(f's_add_u32 s31, s31, {64*1024}')
        gload2('s30', 's31')
        compute(half)
        a('s_waitcnt vmcnt(0)')
        lwrite(1 - half)
        a('s_waitcnt lgkmcnt(0)')
        a('s_barrier')
    a('s_add_u32 s32, s32, 1')
    a('s_cmp_lt_u32 s32, 14')
    a('s_cbranch_scc1 F_loop')
    a('v_lshl_add_u32 v17, v7, 5, v9')
    a('s_lshl_b32 s6, s4, 6')
    a('v_add_u32 v17, s6, v17')
    a('v_lshlrev_b32 v16, 6, v8')
    a('v_lshl_add_u32 v16, v10, 3, v16')
    a('v_add_u32 v16, s7, v16')
    a('v_lshl_add_u32 v18, v17, 10, v16')
    a('v_lshlrev_b32 v19, 11, v16')
    a('v_lshl_add_u32 v19, v17, 1, v19')
    a(f'v_add_u32 v19, {WS_AT}, v19')
    for rq in range(4):
        a(f'buffer_load_dwordx2 v[{32+2*rq}:{33+2*rq}], v16, s[16:19], 0 offen offset:{16*rq}')
        a(f'buffer_load_dwordx2 v[{40+2*rq}:{41+2*rq}], v18, s[20:23], 0 offen offset:{16*rq}')
    for rq in range(4):
        for i in range(4):
            a(f'v_add_u32 v20, {(8*rq+i)*4096}, v19')
            a(f'buffer_load_ushort v{96+4*rq+i}, v20, s[8:11], 0 offen')
    a('s_waitcnt vmcnt(0)')
    a('s_nop 7')
    for rq in range(4):
        for p in range(2):
            y0, y1 = 64 + 4 * rq + 2 * p, 65 + 4 * rq + 2 * p
            b, x = 32 + 2 * rq + p, 40 + 2 * rq + p
            a0, a1 = 96 + 4 * rq + 2 * p, 97 + 4 * rq + 2 * p
            a(f'v_cvt_pk_bf16_f32 v20, v{y0}, v{y1}')
            a('v_lshlrev_b32 v21, 16, v20')
            a('v_and_b32 v22, 0xffff0000, v20')
            a(f'v_lshlrev_b32 v23, 16, v{b}')
            a(f'v_and_b32 v24, 0xffff0000, v{b}')
            a('v_add_f32 v21, v21, v23')
            a('v_add_f32 v22, v22, v24')
            a('v_cvt_pk_bf16_f32 v20, v21, v22')
            a('v_lshlrev_b32 v21, 16, v20')
            a('v_and_b32 v22, 0xffff0000, v20')
            a(f'v_lshlrev_b32 v23, 16, v{x}')
            a(f'v_and_b32 v24, 0xffff0000, v{x}')
            a(f'v_lshlrev_b32 v25, 16, v{a0}')
            a(f'v_lshlrev_b32 v26, 16, v{a1}')
            a('v_add_f32 v23, v23, v25')
            a('v_add_f32 v24, v24, v26')
            a('v_cvt_pk_bf16_f32 v20, v23, v24')
            a('v_lshlrev_b32 v23, 16, v20')
            a('v_and_b32 v24, 0xffff0000, v20')
            a('v_add_f32 v23, v23, v21')
            a('v_add_f32 v24, v24, v22')
            a(f'v_cvt_pk_bf16_f32 v{28+p}, v23, v24')
        a(f'buffer_store_dwordx2 v[28:29], v18, s[24:27], 0 offen offset:{16*rq}')
    a.lab('F_end')
    a('s_endpgm')
    return a.text()

def more_kernels():
    return [('mid_kernel', 480, 2 * (128 * 144 + 64 * 320), gen_mid(), 128),
            ('fin_kernel', 256, 4 * (64 * 144 + 64 * 192), __import__('gen3').gen_fin2(), 256)]
```

```python
import sys
NAME = 'parallel_sum__ssm_conv_s4d__dense_activation_gelu__prompt'

WS_XN  = 0
WS_XNT = 2 << 20
WS_AT  = 4 << 20
WS_KR  = 6 << 20
WS_KR1 = 9 << 20
WS_H   = 12 << 20
WS_W2F = 8912896
WS_W1F = 10747904
WS_SIZE = 20 << 20

class A:
    def __init__(s): s.l = []
    def __call__(s, t): s.l.append('    ' + t)
    def lab(s, t): s.l.append(t + ':')
    def raw(s, t): s.l.append(t)
    def text(s): return '\n'.join(s.l) + '\n'

def f32hex(x):
    import struct
    return '0x%08x' % struct.unpack('<I', struct.pack('<f', x))[0]

def srd(a, d, b, size):
    a(f's_mov_b32 s{d}, s{b}')
    a(f's_and_b32 s{d+1}, s{b+1}, 0xffff')
    a(f's_mov_b32 s{d+2}, {size}')
    a(f's_mov_b32 s{d+3}, 0x00020000')

def kdesc(name, vgpr, sgpr=100):
    acc = (vgpr + 3) // 4 * 4
    return f'''.p2align 6
.amdhsa_kernel {name}
  .amdhsa_next_free_vgpr {vgpr}
  .amdhsa_next_free_sgpr {sgpr}
  .amdhsa_accum_offset {acc}
  .amdhsa_group_segment_fixed_size 0
  .amdhsa_kernarg_size 120
  .amdhsa_user_sgpr_count 2
  .amdhsa_user_sgpr_kernarg_segment_ptr 1
  .amdhsa_system_sgpr_workgroup_id_x 1
.end_amdhsa_kernel
'''

def khead(name):
    return f'''.globl {name}
.p2align 8
.type {name},@function
{name}:
'''

LOG2E = 1.4426950408889634
import struct
def split_f32(x):
    hi = struct.unpack('<f', struct.pack('<f', x))[0]
    lo = x - hi
    return hi, lo
L2E_HI, L2E_LO = split_f32(LOG2E)
LN2 = 0.6931471805599453

def bf16r(a, dst, src, ):
    a(f'v_cvt_pk_bf16_f32 {dst}, {src}, {src}')
    a(f'v_lshlrev_b32 {dst}, 16, {dst}')

def exp_acc(a, dst, x, t, r, sL2EH, sL2EL, sLN2):
    a(f'v_mul_f32 {t}, {sL2EH}, {x}')
    a(f'v_fma_f32 {r}, {x}, {sL2EH}, -{t}')
    a(f'v_fma_f32 {r}, {x}, {sL2EL}, {r}')
    a(f'v_exp_f32 {dst}, {t}')
    a(f'v_mul_f32 {r}, {sLN2}, {r}')
    a(f'v_fma_f32 {dst}, {dst}, {r}, {dst}')

def gen_prep():
    a = A()
    N_LN = 64
    a(f's_cmp_ge_u32 s2, {N_LN + 512}')
    a('s_cbranch_scc1 P_end')
    a('s_load_dwordx16 s[36:51], s[0:1], 0')
    a('s_load_dwordx2 s[52:53], s[0:1], 112')
    a('s_waitcnt lgkmcnt(0)')
    srd(a, 8, 52, WS_SIZE)
    a(f's_cmp_ge_u32 s2, {N_LN}')
    a('s_cbranch_scc1 P_kgen')
    srd(a, 4, 36, 2048 * 512 * 2)
    a('v_lshrrev_b32 v1, 3, v0')
    a('v_and_b32 v2, 7, v0')
    a('s_lshl_b32 s12, s2, 15')
    a('v_lshlrev_b32 v3, 10, v1')
    a('v_lshl_add_u32 v3, v2, 4, v3')
    a('v_add_u32 v3, s12, v3')
    for q in range(8):
        a(f'buffer_load_dwordx4 v[{16+4*q}:{19+4*q}], v3, s[4:7], 0 offen offset:{128*q}')
    a('s_waitcnt vmcnt(0)')
    for i in range(32):
        a(f'v_lshlrev_b32 v{64+2*i}, 16, v{16+i}')
        a(f'v_and_b32 v{65+2*i}, 0xffff0000, v{16+i}')
    a('v_add_f32 v4, v64, v65')
    for i in range(2, 64, 2):
        a(f'v_add_f32 v5, v{64+i}, v{65+i}')
        a('v_add_f32 v4, v4, v5')
    def red8(reg):
        for off in (0x041F, 0x081F, 0x101F):
            a(f'ds_swizzle_b32 v5, {reg} offset:{off}')
            a('s_waitcnt lgkmcnt(0)')
            a(f'v_add_f32 {reg}, {reg}, v5')
    red8('v4')
    a(f'v_mul_f32 v4, {f32hex(1/512)}, v4')
    a('v_sub_f32 v5, v64, v4')
    a('v_mul_f32 v6, v5, v5')
    for i in range(1, 64):
        a(f'v_sub_f32 v5, v{64+i}, v4')
        a('v_fmac_f32 v6, v5, v5')
    red8('v6')
    a(f'v_mul_f32 v6, {f32hex(1/512)}, v6')
    bf16r(a, 'v4', 'v4')
    bf16r(a, 'v6', 'v6')
    a(f'v_add_f32 v6, {f32hex(1e-5)}, v6')
    bf16r(a, 'v6', 'v6')
    a('v_sqrt_f32 v6, v6')
    a('s_nop 1')
    bf16r(a, 'v6', 'v6')
    a('v_rcp_f32 v7, v6')
    a('s_nop 1')
    for i in range(32):
        x0, x1 = f'v{64+2*i}', f'v{65+2*i}'
        a(f'v_sub_f32 {x0}, {x0}, v4')
        a(f'v_sub_f32 {x1}, {x1}, v4')
        a(f'v_cvt_pk_bf16_f32 v8, {x0}, {x1}')
        a(f'v_lshlrev_b32 {x0}, 16, v8')
        a(f'v_and_b32 {x1}, 0xffff0000, v8')
        a(f'v_mul_f32 v8, {x0}, v7')
        a(f'v_mul_f32 v9, {x1}, v7')
        a(f'v_fma_f32 {x0}, -v8, v6, {x0}')
        a(f'v_fma_f32 {x1}, -v9, v6, {x1}')
        a(f'v_fma_f32 v8, {x0}, v7, v8')
        a(f'v_fma_f32 v9, {x1}, v7, v9')
        a(f'v_cvt_pk_bf16_f32 v{16+i}, v8, v9')
    for q in range(8):
        a(f'buffer_store_dwordx4 v[{16+4*q}:{19+4*q}], v3, s[8:11], 0 offen offset:{128*q}')
    a('v_mul_u32_u24 v10, 1040, v1')
    a('v_lshl_add_u32 v10, v2, 4, v10')
    for q in range(8):
        a(f'ds_write_b128 v10, v[{16+4*q}:{19+4*q}] offset:{128*q}')
    a('s_waitcnt lgkmcnt(0)')
    a('s_barrier')
    a('v_lshlrev_b32 v10, 2, v0')
    for r in range(32):
        a(f'ds_read_b32 v{64+r}, v10 offset:{1040*r}')
    a('s_mov_b32 s14, 0x05040100')
    a('s_mov_b32 s15, 0x07060302')
    a('s_waitcnt lgkmcnt(0)')
    for k in range(16):
        a(f'v_perm_b32 v{16+k}, v{65+2*k}, v{64+2*k}, s14')
        a(f'v_perm_b32 v{32+k}, v{65+2*k}, v{64+2*k}, s15')
    a('s_lshl_b32 s12, s2, 6')
    a(f's_add_u32 s12, s12, {WS_XNT}')
    a('v_lshlrev_b32 v10, 13, v0')
    a('v_add_u32 v10, s12, v10')
    a('v_add_u32 v11, 4096, v10')
    for q in range(4):
        a(f'buffer_store_dwordx4 v[{16+4*q}:{19+4*q}], v10, s[8:11], 0 offen offset:{16*q}')
        a(f'buffer_store_dwordx4 v[{32+4*q}:{35+4*q}], v11, s[8:11], 0 offen offset:{16*q}')
    a('s_endpgm')
    a.lab('P_kgen')
    a(f's_sub_u32 s3, s2, {N_LN}')
    srd(a, 12, 38, 512 * 128 * 2)
    srd(a, 16, 40, 512 * 128 * 2)
    srd(a, 20, 42, 512 * 128 * 2)
    srd(a, 24, 44, 512 * 128 * 2)
    srd(a, 28, 46, 512 * 2)
    a('v_and_b32 v1, 127, v0')
    a('v_lshrrev_b32 v2, 7, v0')
    a('s_lshl_b32 s4, s3, 8')
    a('v_lshl_add_u32 v3, v1, 1, s4')
    a('s_lshl_b32 s5, s3, 1')
    a('v_mov_b32 v4, s5')
    a('buffer_load_ushort v5, v3, s[12:15], 0 offen')
    a('buffer_load_ushort v6, v3, s[16:19], 0 offen')
    a('buffer_load_ushort v7, v3, s[20:23], 0 offen')
    a('buffer_load_ushort v8, v3, s[24:27], 0 offen')
    a('buffer_load_ushort v9, v4, s[28:31], 0 offen')
    a(f's_mov_b32 s32, {f32hex(L2E_HI)}')
    a(f's_mov_b32 s33, {f32hex(L2E_LO)}')
    a(f's_mov_b32 s34, {f32hex(LN2)}')
    a(f's_mov_b32 s35, {f32hex(1/(2*3.141592653589793))}')
    a('s_waitcnt vmcnt(0)')
    for r in (5, 6, 7, 8, 9):
        a(f'v_lshlrev_b32 v{r}, 16, v{r}')
    exp_acc(a, 'v10', 'v9', 'v11', 'v12', 's32', 's33', 's34')
    bf16r(a, 'v10', 'v10')
    exp_acc(a, 'v13', 'v5', 'v11', 'v12', 's32', 's33', 's34')
    bf16r(a, 'v13', 'v13')
    a('v_mul_f32 v13, v13, v10')
    a('v_sub_f32 v13, 0, v13')
    a('v_mul_f32 v14, v6, v10')
    a('v_mul_f32 v15, v7, v10')
    a('v_mul_f32 v16, v8, v10')
    a('v_lshrrev_b32 v17, 3, v1')
    a('v_lshlrev_b32 v17, 10, v17')
    a('v_and_b32 v18, 1, v1')
    a('v_lshl_add_u32 v17, v18, 9, v17')
    a('v_bfe_u32 v18, v1, 1, 2')
    a('v_lshl_add_u32 v17, v18, 2, v17')
    def cexp(dr, di, p, t0, t1):
        a(f'v_mul_f32 {t0}, v13, {p}')
        a(f'v_mul_f32 {t0}, s32, {t0}')
        a(f'v_exp_f32 {t0}, {t0}')
        a(f'v_mul_f32 {t1}, v14, {p}')
        a(f'v_mul_f32 {t1}, s35, {t1}')
        a(f'v_fract_f32 {t1}, {t1}')
        a(f'v_cos_f32 {dr}, {t1}')
        a(f'v_sin_f32 {di}, {t1}')
        a('s_nop 1')
        a(f'v_mul_f32 {dr}, {dr}, {t0}')
        a(f'v_mul_f32 {di}, {di}, {t0}')
    def cmul(zr, zi, wr, wi, t0, t1):
        a(f'v_mul_f32 {t0}, {zi}, {wi}')
        a(f'v_mul_f32 {t1}, {zi}, {wr}')
        a(f'v_fma_f32 {t0}, {zr}, {wr}, -{t0}')
        a(f'v_fma_f32 {zi}, {zr}, {wi}, {t1}')
        a(f'v_mov_b32 {zr}, {t0}')
    for it in range(2):
        a(f'v_lshl_add_u32 v20, v2, 1, {it}')
        a('v_lshlrev_b32 v21, v20, 1')
        a('v_cvt_f32_u32 v22, v21')
        a('v_mul_f32 v23, 16.0, v22')
        a('v_mul_f32 v24, 0x43000000, v22')
        a('v_cmp_eq_u32 vcc, 0, v20')
        a('s_nop 1')
        a('v_cndmask_b32 v24, v24, 0, vcc')
        a('v_lshl_add_u32 v19, v20, 15, v17')
        cexp('v25', 'v26', 'v22', 'v30', 'v31')
        cexp('v27', 'v28', 'v23', 'v30', 'v31')
        cexp('v32', 'v33', 'v24', 'v30', 'v31')
        cmul('v32', 'v33', 'v15', 'v16', 'v30', 'v31')
        for i in range(16):
            a(f'ds_write_b32 v19, v32 offset:{16*i}')
            a('v_sub_f32 v34, 0, v33')
            a(f'ds_write_b32 v19, v34 offset:{256+16*i}')
            if i < 15: cmul('v32', 'v33', 'v27', 'v28', 'v30', 'v31')
        a('v_mov_b32 v32, 1.0')
        a('v_mov_b32 v33, 0')
        for j in range(16):
            a(f'ds_write_b32 v19, v32 offset:{16384+16*j}')
            a(f'ds_write_b32 v19, v33 offset:{16384+256+16*j}')
            if j < 15: cmul('v32', 'v33', 'v25', 'v26', 'v30', 'v31')
    a('s_waitcnt lgkmcnt(0)')
    a('s_barrier')
    a('v_lshrrev_b32 v20, 6, v0')
    a('v_and_b32 v21, 63, v0')
    a('v_lshlrev_b32 v22, 15, v20')
    a('v_lshl_add_u32 v22, v21, 4, v22')
    for r in range(8): a(f'v_mov_b32 v{40+r}, 0')
    for S in range(16):
        a(f'ds_read_b128 v[48:51], v22 offset:{1024*S}')
        a(f'ds_read_b128 v[52:55], v22 offset:{16384+1024*S}')
        a('s_waitcnt lgkmcnt(0)')
        for q in range(4):
            acc = 40 + 4 * (q & 1)
            a(f'v_mfma_f32_16x16x4_f32 v[{acc}:{acc+3}], v{48+q}, v{52+q}, v[{acc}:{acc+3}]')
    a('s_nop 15')
    a('s_nop 15')
    for r in range(4):
        a(f'v_add_f32 v{40+r}, v{40+r}, v{44+r}')
        a(f'v_add_f32 v{40+r}, v{40+r}, v{40+r}')
    a('v_lshrrev_b32 v23, 4, v21')
    a('v_lshlrev_b32 v23, 8, v23')
    a('v_and_b32 v24, 15, v21')
    a('v_lshl_add_u32 v23, v24, 2, v23')
    a('v_lshl_add_u32 v23, v20, 10, v23')
    a('v_add_u32 v23, 131072, v23')
    for r in range(4):
        a(f'ds_write_b32 v23, v{40+r} offset:{64*r}')
    a('s_waitcnt lgkmcnt(0)')
    a('s_barrier')
    a('v_lshlrev_b32 v23, 3, v0')
    for e in range(8):
        a(f'v_sub_u32 v24, {2047 - e}, v23')
        a('v_cvt_f32_u32 v25, v24')
        a('v_bfe_u32 v26, v25, 16, 1')
        a('v_add3_u32 v25, v25, v26, 0x7fff') if False else None
        a('v_add_u32 v25, v25, v26')
        a('v_add_u32 v25, 0x7fff, v25')
        a('v_and_b32 v25, 0xffff0000, v25')
        a('v_lshrrev_b32 v26, 23, v25')
        a('v_cvt_u32_f32 v27, v25')
        a('v_subrev_u32 v26, 134, v26')
        a('v_max_i32 v26, 0, v26')
        a('v_min_i32 v26, 3, v26')
        a('v_lshrrev_b32 v27, v26, v27')
        a('v_cmp_eq_u32 vcc, 0, v26')
        a('v_subrev_u32 v28, 128, v27')
        a('s_nop 0')
        a('v_cndmask_b32 v27, v28, v27, vcc')
        a('v_lshl_add_u32 v27, v26, 8, v27')
        a('v_lshlrev_b32 v27, 2, v27')
        a(f'ds_read_b32 v{48+e}, v27 offset:131072' if False else f'v_add_u32 v27, 131072, v27')
        a(f'ds_read_b32 v{48+e}, v27')
    a('s_waitcnt lgkmcnt(0)')
    for e in range(4):
        a(f'v_cvt_pk_bf16_f32 v{56+e}, v{48+2*e}, v{49+2*e}')
    a('s_lshl_b32 s4, s3, 12')
    a(f's_add_u32 s4, s4, {WS_KR}')
    a('v_lshl_add_u32 v23, v0, 4, s4')
    a('buffer_store_dwordx4 v[56:59], v23, s[8:11], 0 offen')
    a.lab('P_end')
    a('s_endpgm')
    return a.text()

def build(kernels):
    hdr = open('cdna_kernels/' + NAME + '.s.ref').read().split('; Override')[0]
    out = hdr
    for (nm, grid, lds, body, vg) in kernels:
        out += f'; @launch kernel={nm} grid=({grid},1,1) block=(256,1,1) lds={lds}\n'
    out += '.amdgcn_target "amdgcn-amd-amdhsa--gfx950"\n.text\n'
    for (nm, grid, lds, body, vg) in kernels:
        out += khead(nm) + body
    out += '.section .rodata,"a"\n'
    for (nm, grid, lds, body, vg) in kernels:
        out += kdesc(nm, vg)
    return out

if __name__ == '__main__':
    from gen4 import gen_prep2
    t, l = gen_prep2()
    ks = [('prep_kernel', 576, l, t, 128)]
    try:
        from gen2 import more_kernels
        ks += more_kernels()
    except ImportError:
        pass
    open(sys.argv[1] if len(sys.argv) > 1 else 'k.s', 'w').write(build(ks))
```

```python
from gen import A, srd, f32hex, bf16r, WS_XN, WS_XNT, WS_KR, WS_AT, WS_H, WS_SIZE, LOG2E

import os
STAMP = os.environ.get('STAMP','')
def stamp(a, idx):
    if not STAMP: return
    a('s_memtime s[90:91]')
    a('s_waitcnt lgkmcnt(0)')
    a(f'v_mov_b32 v250, s90')
    a(f'v_mov_b32 v251, {idx*4}')
    a('s_mov_b64 s[94:95], exec')
    a('v_cmp_eq_u32 vcc, 0, v0')
    a('s_cmp_eq_u32 s2, 0')
    a('s_cselect_b64 s[92:93], vcc, 0')
    a('s_mov_b64 exec, s[92:93]')
    a('buffer_store_dword v250, v251, s[84:87], 0 offen')
    a('s_mov_b64 exec, s[94:95]')

def gen_fin2():
    a = A()
    a('s_cmp_ge_u32 s2, 256')
    a('s_cbranch_scc1 F_end')
    a('s_load_dwordx2 s[36:37], s[0:1], 0')
    a('s_load_dwordx8 s[52:59], s[0:1], 64')
    a('s_load_dwordx4 s[60:63], s[0:1], 96')
    a('s_load_dwordx2 s[64:65], s[0:1], 112')
    a('s_waitcnt lgkmcnt(0)')
    srd(a, 8, 64, WS_SIZE)
    srd(a, 12, 56, 1792 * 512 * 2)
    srd(a, 16, 58, 512 * 2)
    srd(a, 20, 36, 2048 * 512 * 2)
    srd(a, 24, 60, 2048 * 512 * 2)
    srd(a, 84, 62, 256)
    stamp(a, 0)
    a('s_and_b32 s4, s2, 7')
    a('s_lshl_b32 s4, s4, 2')
    a('s_bfe_u32 s5, s2, 0x20003')
    a('s_add_u32 s4, s4, s5')
    a('s_lshr_b32 s5, s2, 5')
    ASZ, BSZ = 64 * 144, 64 * 192
    WSZ = ASZ + BSZ
    a('v_lshrrev_b32 v1, 6, v0')
    a('v_and_b32 v2, 63, v0')
    a('v_readfirstlane_b32 s28, v1')
    a('v_lshrrev_b32 v9, 3, v2')
    a('v_and_b32 v10, 7, v2')
    a(f's_mul_i32 s6, s4, {64*3584}')
    a(f's_add_u32 s6, s6, {WS_H}')
    a('v_mul_u32_u24 v3, 3584, v9')
    a('v_lshl_add_u32 v3, v10, 4, v3')
    a('v_add_u32 v3, s6, v3')
    a(f's_mul_i32 s29, s28, {WSZ}')
    a('v_mul_u32_u24 v4, 144, v9')
    a('v_lshl_add_u32 v4, v10, 4, v4')
    a('v_add_u32 v4, s29, v4')
    a('v_lshlrev_b32 v5, 10, v9')
    a('v_lshl_add_u32 v5, v10, 4, v5')
    a('s_lshl_b32 s7, s5, 7')
    a('v_add_u32 v5, s7, v5')
    a('v_mul_u32_u24 v6, 192, v9')
    a('v_lshl_add_u32 v6, v10, 4, v6')
    a(f'v_add_u32 v6, {ASZ}, v6')
    a('v_add_u32 v6, s29, v6')
    a('v_and_b32 v9, 31, v2')
    a('v_bfe_u32 v10, v2, 5, 1')
    a('v_mul_u32_u24 v11, 144, v9')
    a('v_lshl_add_u32 v11, v10, 4, v11')
    a('v_add_u32 v11, s29, v11')
    a('v_bfe_u32 v12, v2, 2, 2')
    a('v_lshl_add_u32 v12, v10, 3, v12')
    a('v_mul_u32_u24 v12, 192, v12')
    a('v_bfe_u32 v13, v2, 4, 1')
    a('v_lshlrev_b32 v13, 5, v13')
    a('v_and_b32 v14, 3, v2')
    a('v_lshl_add_u32 v13, v14, 3, v13')
    a('v_add_u32 v12, v12, v13')
    a(f'v_add_u32 v12, {ASZ}, v12')
    a('v_add_u32 v12, s29, v12')
    for r in range(64): a(f'v_mov_b32 v{64+r}, 0')
    def gload(st, i):
        a(f's_add_u32 s30, s28, {4*i}')
        a('s_lshl_b32 s31, s30, 16')
        a('s_lshl_b32 s30, s30, 7')
        for q in range(8):
            a(f'v_add_u32 v15, {8*3584*q}, v3')
            a(f'buffer_load_dwordx4 v[{st+4*q}:{st+3+4*q}], v15, s[8:11], s30 offen')
        for q in range(8):
            a(f'buffer_load_dwordx4 v[{st+32+4*q}:{st+35+4*q}], v5, s[12:15], s31 offen offset:{0}' if q == 0 else
              f'buffer_load_dwordx4 v[{st+32+4*q}:{st+35+4*q}], v15, s[12:15], s31 offen')
            if q < 7: a(f'v_add_u32 v15, {8*1024*(q+1)}, v5')
    def lwrite(st):
        for q in range(8):
            a(f'ds_write_b128 v4, v[{st+4*q}:{st+3+4*q}] offset:{8*144*q}')
        for q in range(8):
            a(f'ds_write_b128 v6, v[{st+32+4*q}:{st+35+4*q}] offset:{8*192*q}')
    def compute():
        for kp in range(2):
            for kk2 in range(2):
                kk = 2 * kp + kk2
                fa = 16 + 16 * kk2
                for mt in range(2):
                    a(f'ds_read_b128 v[{fa+4*mt}:{fa+3+4*mt}], v11 offset:{mt*32*144 + kk*32}')
                for nt in range(2):
                    for u in range(2):
                        a(f'ds_read_b64_tr_b16 v[{fa+8+4*nt+2*u}:{fa+9+4*nt+2*u}], v12 offset:{(kk*16+4*u)*192 + nt*64}')
            for kk2 in range(2):
                fa = 16 + 16 * kk2
                a(f's_waitcnt lgkmcnt({6*(1-kk2)})')
                for mt in range(2):
                    for nt in range(2):
                        acc = 64 + 16 * (2 * mt + nt)
                        a(f'v_mfma_f32_32x32x16_bf16 v[{acc}:{acc+15}], v[{fa+8+4*nt}:{fa+11+4*nt}], v[{fa+4*mt}:{fa+3+4*mt}], v[{acc}:{acc+15}]')
    SET = (128, 192)
    gload(SET[0], 0)
    gload(SET[1], 1)
    stamp(a, 1)
    for i in range(7):
        a(f's_waitcnt vmcnt({16 if i < 6 else 0})')
        stamp(a, 2+i)
        lwrite(SET[i % 2])
        a('s_waitcnt lgkmcnt(0)')
        if i + 2 < 7: gload(SET[i % 2], i + 2)
        compute()
    stamp(a, 9)
    a('s_nop 7')
    a('s_nop 7')
    a('s_barrier')
    a('v_lshlrev_b32 v16, 4, v2')
    a('v_lshl_add_u32 v17, v1, 14, v16')
    for r4 in range(16):
        a(f'ds_write_b128 v17, v[{64+4*r4}:{67+4*r4}] offset:{1024*r4}')
    a('s_waitcnt lgkmcnt(0)')
    a('s_barrier')
    a('v_lshl_add_u32 v17, v1, 12, v16')
    for src in range(4):
        for r4 in range(4):
            a(f'ds_read_b128 v[{128+16*src+4*r4}:{131+16*src+4*r4}], v17 offset:{16384*src + 1024*r4}')
    a('s_waitcnt lgkmcnt(0)')
    for r in range(16):
        a(f'v_add_f32 v{128+r}, v{128+r}, v{144+r}')
        a(f'v_add_f32 v{160+r}, v{160+r}, v{176+r}')
        a(f'v_add_f32 v{64+r}, v{128+r}, v{160+r}')
    stamp(a, 10)
    a('v_lshrrev_b32 v7, 1, v1')
    a('v_and_b32 v8, 1, v1')
    a('v_lshl_add_u32 v17, v7, 5, v9')
    a('s_lshl_b32 s6, s4, 6')
    a('v_add_u32 v17, s6, v17')
    a('v_lshlrev_b32 v16, 6, v8')
    a('v_lshl_add_u32 v16, v10, 3, v16')
    a('v_add_u32 v16, s7, v16')
    a('v_lshl_add_u32 v18, v17, 10, v16')
    a('v_lshlrev_b32 v19, 11, v16')
    a('v_lshl_add_u32 v19, v17, 1, v19')
    a(f'v_add_u32 v19, {WS_AT}, v19')
    for rq in range(4):
        a(f'buffer_load_dwordx2 v[{32+2*rq}:{33+2*rq}], v16, s[16:19], 0 offen offset:{16*rq}')
        a(f'buffer_load_dwordx2 v[{40+2*rq}:{41+2*rq}], v18, s[20:23], 0 offen offset:{16*rq}')
    for rq in range(4):
        for i in range(4):
            a(f'v_add_u32 v20, {(8*rq+i)*4096}, v19')
            a(f'buffer_load_ushort v{96+4*rq+i}, v20, s[8:11], 0 offen')
    a('s_waitcnt vmcnt(0)')
    for rq in range(4):
        for p in range(2):
            y0, y1 = 64 + 4 * rq + 2 * p, 65 + 4 * rq + 2 * p
            b, x = 32 + 2 * rq + p, 40 + 2 * rq + p
            a0, a1 = 96 + 4 * rq + 2 * p, 97 + 4 * rq + 2 * p
            a(f'v_cvt_pk_bf16_f32 v20, v{y0}, v{y1}')
            a('v_lshlrev_b32 v21, 16, v20')
            a('v_and_b32 v22, 0xffff0000, v20')
            a(f'v_lshlrev_b32 v23, 16, v{b}')
            a(f'v_and_b32 v24, 0xffff0000, v{b}')
            a('v_add_f32 v21, v21, v23')
            a('v_add_f32 v22, v22, v24')
            a('v_cvt_pk_bf16_f32 v20, v21, v22')
            a('v_lshlrev_b32 v21, 16, v20')
            a('v_and_b32 v22, 0xffff0000, v20')
            a(f'v_lshlrev_b32 v23, 16, v{x}')
            a(f'v_and_b32 v24, 0xffff0000, v{x}')
            a(f'v_lshlrev_b32 v25, 16, v{a0}')
            a(f'v_lshlrev_b32 v26, 16, v{a1}')
            a('v_add_f32 v23, v23, v25')
            a('v_add_f32 v24, v24, v26')
            a('v_cvt_pk_bf16_f32 v20, v23, v24')
            a('v_lshlrev_b32 v23, 16, v20')
            a('v_and_b32 v24, 0xffff0000, v20')
            a('v_add_f32 v23, v23, v21')
            a('v_add_f32 v24, v24, v22')
            a(f'v_cvt_pk_bf16_f32 v{28+p}, v23, v24')
        a(f'buffer_store_dwordx2 v[28:29], v18, s[24:27], 0 offen offset:{16*rq}')
    a('s_waitcnt vmcnt(0)')
    stamp(a, 11)
    a.lab('F_end')
    a('s_endpgm')
    return a.text()
```

```python
from gen import A, srd, f32hex, bf16r, exp_acc, L2E_HI, L2E_LO, LN2, LOG2E
from gen3 import stamp
from gen import WS_XN, WS_XNT, WS_AT, WS_KR, WS_KR1, WS_H, WS_SIZE
KRS = 4352
GC1 = -2 * 0.7978845608028654 * LOG2E
GC2 = GC1 * 0.044715

def gen_prep2():
    a = A()
    N_LN = 64
    a(f's_cmp_ge_u32 s2, {N_LN + 512}')
    a('s_cbranch_scc1 P_end')
    a('s_load_dwordx16 s[36:51], s[0:1], 0')
    a('s_load_dwordx2 s[52:53], s[0:1], 112')
    a('s_waitcnt lgkmcnt(0)')
    srd(a, 8, 52, WS_SIZE)
    a(f's_cmp_ge_u32 s2, {N_LN}')
    a('s_cbranch_scc1 P_kgen')
    srd(a, 4, 36, 2048 * 512 * 2)
    a('v_lshrrev_b32 v1, 3, v0')
    a('v_and_b32 v2, 7, v0')
    a('s_lshl_b32 s12, s2, 15')
    a('v_lshlrev_b32 v3, 10, v1')
    a('v_lshl_add_u32 v3, v2, 4, v3')
    a('v_add_u32 v3, s12, v3')
    for q in range(8):
        a(f'buffer_load_dwordx4 v[{16+4*q}:{19+4*q}], v3, s[4:7], 0 offen offset:{128*q}')
    a('s_waitcnt vmcnt(0)')
    for i in range(32):
        a(f'v_lshlrev_b32 v{64+2*i}, 16, v{16+i}')
        a(f'v_and_b32 v{65+2*i}, 0xffff0000, v{16+i}')
    a('v_add_f32 v4, v64, v65')
    a('v_add_f32 v5, v66, v67')
    for i in range(4, 64, 4):
        a(f'v_add_f32 v6, v{64+i}, v{65+i}')
        a(f'v_add_f32 v7, v{66+i}, v{67+i}')
        a('v_add_f32 v4, v4, v6')
        a('v_add_f32 v5, v5, v7')
    a('v_add_f32 v4, v4, v5')
    def red8(reg):
        for off in (0x041F, 0x081F, 0x101F):
            a(f'ds_swizzle_b32 v5, {reg} offset:{off}')
            a('s_waitcnt lgkmcnt(0)')
            a(f'v_add_f32 {reg}, {reg}, v5')
    red8('v4')
    a(f'v_mul_f32 v4, {f32hex(1/512)}, v4')
    a('v_sub_f32 v5, v64, v4')
    a('v_sub_f32 v7, v65, v4')
    a('v_mul_f32 v6, v5, v5')
    a('v_mul_f32 v8, v7, v7')
    for i in range(2, 64, 2):
        a(f'v_sub_f32 v5, v{64+i}, v4')
        a(f'v_sub_f32 v7, v{65+i}, v4')
        a('v_fmac_f32 v6, v5, v5')
        a('v_fmac_f32 v8, v7, v7')
    a('v_add_f32 v6, v6, v8')
    red8('v6')
    a(f'v_mul_f32 v6, {f32hex(1/512)}, v6')
    bf16r(a, 'v4', 'v4')
    bf16r(a, 'v6', 'v6')
    a(f'v_add_f32 v6, {f32hex(1e-5)}, v6')
    bf16r(a, 'v6', 'v6')
    a('v_sqrt_f32 v6, v6')
    a('s_nop 1')
    bf16r(a, 'v6', 'v6')
    a('v_rcp_f32 v7, v6')
    a('s_nop 1')
    for i in range(32):
        x0, x1 = f'v{64+2*i}', f'v{65+2*i}'
        a(f'v_sub_f32 {x0}, {x0}, v4')
        a(f'v_sub_f32 {x1}, {x1}, v4')
        a(f'v_cvt_pk_bf16_f32 v8, {x0}, {x1}')
        a(f'v_lshlrev_b32 {x0}, 16, v8')
        a(f'v_and_b32 {x1}, 0xffff0000, v8')
        a(f'v_mul_f32 v8, {x0}, v7')
        a(f'v_mul_f32 v9, {x1}, v7')
        a(f'v_fma_f32 {x0}, -v8, v6, {x0}')
        a(f'v_fma_f32 {x1}, -v9, v6, {x1}')
        a(f'v_fma_f32 v8, {x0}, v7, v8')
        a(f'v_fma_f32 v9, {x1}, v7, v9')
        a(f'v_cvt_pk_bf16_f32 v{16+i}, v8, v9')
    for q in range(8):
        a(f'buffer_store_dwordx4 v[{16+4*q}:{19+4*q}], v3, s[8:11], 0 offen offset:{128*q}')
    a('v_mul_u32_u24 v10, 1040, v1')
    a('v_lshl_add_u32 v10, v2, 4, v10')
    for q in range(8):
        a(f'ds_write_b128 v10, v[{16+4*q}:{19+4*q}] offset:{128*q}')
    a('s_waitcnt lgkmcnt(0)')
    a('s_barrier')
    a('v_lshlrev_b32 v10, 2, v0')
    for r in range(32):
        a(f'ds_read_b32 v{64+r}, v10 offset:{1040*r}')
    a('s_mov_b32 s14, 0x05040100')
    a('s_mov_b32 s15, 0x07060302')
    a('s_waitcnt lgkmcnt(0)')
    for k in range(16):
        a(f'v_perm_b32 v{16+k}, v{65+2*k}, v{64+2*k}, s14')
        a(f'v_perm_b32 v{32+k}, v{65+2*k}, v{64+2*k}, s15')
    a('s_lshl_b32 s12, s2, 6')
    a(f's_add_u32 s12, s12, {WS_XNT}')
    a('v_lshlrev_b32 v10, 13, v0')
    a('v_add_u32 v10, s12, v10')
    a('v_add_u32 v11, 4096, v10')
    for q in range(4):
        a(f'buffer_store_dwordx4 v[{16+4*q}:{19+4*q}], v10, s[8:11], 0 offen offset:{16*q}')
        a(f'buffer_store_dwordx4 v[{32+4*q}:{35+4*q}], v11, s[8:11], 0 offen offset:{16*q}')
    a('s_endpgm')
    RSB = 528; MSZ = 16 * RSB; SLOT = 4 * MSZ
    KD = 2 * SLOT
    a.lab('P_kgen')
    a(f's_sub_u32 s3, s2, {N_LN}')
    srd(a, 12, 38, 512 * 128 * 2)
    srd(a, 16, 40, 512 * 128 * 2)
    srd(a, 20, 42, 512 * 128 * 2)
    srd(a, 24, 44, 512 * 128 * 2)
    srd(a, 28, 46, 512 * 2)
    a('v_and_b32 v1, 127, v0')
    a('v_lshrrev_b32 v2, 7, v0')
    a('s_lshl_b32 s4, s3, 8')
    a('v_lshl_add_u32 v3, v1, 1, s4')
    a('s_lshl_b32 s5, s3, 1')
    a('v_mov_b32 v4, s5')
    a('buffer_load_ushort v5, v3, s[12:15], 0 offen')
    a('buffer_load_ushort v6, v3, s[16:19], 0 offen')
    a('buffer_load_ushort v7, v3, s[20:23], 0 offen')
    a('buffer_load_ushort v8, v3, s[24:27], 0 offen')
    a('buffer_load_ushort v9, v4, s[28:31], 0 offen')
    a(f's_mov_b32 s32, {f32hex(L2E_HI)}')
    a(f's_mov_b32 s33, {f32hex(L2E_LO)}')
    a(f's_mov_b32 s34, {f32hex(LN2)}')
    a(f's_mov_b32 s35, {f32hex(1/(2*3.141592653589793))}')
    a('s_waitcnt vmcnt(0)')
    for r in (5, 6, 7, 8, 9):
        a(f'v_lshlrev_b32 v{r}, 16, v{r}')
    exp_acc(a, 'v10', 'v9', 'v11', 'v12', 's32', 's33', 's34')
    bf16r(a, 'v10', 'v10')
    exp_acc(a, 'v13', 'v5', 'v11', 'v12', 's32', 's33', 's34')
    bf16r(a, 'v13', 'v13')
    a('v_mul_f32 v13, v13, v10')
    a('v_sub_f32 v13, 0, v13')
    a('v_mul_f32 v14, v6, v10')
    a('v_mul_f32 v15, v7, v10')
    a('v_mul_f32 v16, v8, v10')
    a(f'v_mul_u32_u24 v17, {SLOT}, v2')
    a('v_lshl_add_u32 v17, v1, 2, v17')
    def cexp(dr, di, p, t0, t1):
        a(f'v_mul_f32 {t0}, v13, {p}')
        a(f'v_mul_f32 {t0}, s32, {t0}')
        a(f'v_exp_f32 {t0}, {t0}')
        a(f'v_mul_f32 {t1}, v14, {p}')
        a(f'v_mul_f32 {t1}, s35, {t1}')
        a(f'v_fract_f32 {t1}, {t1}')
        a(f'v_cos_f32 {dr}, {t1}')
        a(f'v_sin_f32 {di}, {t1}')
        a('s_nop 1')
        a(f'v_mul_f32 {dr}, {dr}, {t0}')
        a(f'v_mul_f32 {di}, {di}, {t0}')
    def cmul(zr, zi, wr, wi, t0, t1):
        a(f'v_mul_f32 {t0}, {zi}, {wi}')
        a(f'v_mul_f32 {t1}, {zi}, {wr}')
        a(f'v_fma_f32 {t0}, {zr}, {wr}, -{t0}')
        a(f'v_fma_f32 {zi}, {zr}, {wi}, {t1}')
        a(f'v_mov_b32 {zr}, {t0}')
    def emit(zr, zi, off, neg):
        src_i = f'-{zi}' if neg else zi
        a(f'v_cvt_pk_bf16_f32 v34, {zr}, {src_i}')
        a('v_lshlrev_b32 v35, 16, v34')
        a('v_and_b32 v36, 0xffff0000, v34')
        a(f'v_sub_f32 v35, {zr}, v35')
        a(f'v_sub_f32 v36, {src_i}, v36')
        a('v_cvt_pk_bf16_f32 v35, v35, v36')
        a(f'ds_write_b32 v17, v34 offset:{off}')
        a(f'ds_write_b32 v17, v35 offset:{off + MSZ}')
    a('v_lshrrev_b32 v40, 6, v0')
    a('v_and_b32 v41, 63, v0')
    a('v_and_b32 v42, 1, v40')
    a('v_lshrrev_b32 v43, 1, v40')
    a(f'v_mul_u32_u24 v44, {SLOT}, v42')
    a('v_and_b32 v45, 15, v41')
    a(f'v_mul_u32_u24 v45, {RSB}, v45')
    a('v_add_u32 v44, v44, v45')
    a('v_lshrrev_b32 v45, 4, v41')
    a('v_lshl_add_u32 v44, v45, 4, v44')
    a('v_lshl_add_u32 v44, v43, 8, v44')
    for rnd in range(2):
        a(f'v_add_u32 v20, {2*rnd}, v2')
        a('v_lshlrev_b32 v21, v20, 1')
        a('v_cvt_f32_u32 v22, v21')
        a('v_mul_f32 v23, 16.0, v22')
        a('v_mul_f32 v24, 0x43000000, v22')
        a('v_cmp_eq_u32 vcc, 0, v20')
        a('s_nop 1')
        a('v_cndmask_b32 v24, v24, 0, vcc')
        cexp('v25', 'v26', 'v22', 'v30', 'v31')
        cexp('v27', 'v28', 'v23', 'v30', 'v31')
        cexp('v32', 'v33', 'v24', 'v30', 'v31')
        cmul('v32', 'v33', 'v15', 'v16', 'v30', 'v31')
        if rnd == 1:
            a('s_barrier')
        for i in range(16):
            emit('v32', 'v33', RSB * i, True)
            if i < 15: cmul('v32', 'v33', 'v27', 'v28', 'v30', 'v31')
        a('v_mov_b32 v32, 1.0')
        a('v_mov_b32 v33, 0')
        for j in range(16):
            emit('v32', 'v33', 2 * MSZ + RSB * j, False)
            if j < 15: cmul('v32', 'v33', 'v25', 'v26', 'v30', 'v31')
        a('s_waitcnt lgkmcnt(0)')
        a('s_barrier')
        for r in range(4): a(f'v_mov_b32 v{48+r}, 0')
        for ks in range(4):
            o = 64 * ks
            a(f'ds_read_b128 v[52:55], v44 offset:{o}')
            a(f'ds_read_b128 v[56:59], v44 offset:{MSZ + o}')
            a(f'ds_read_b128 v[60:63], v44 offset:{2*MSZ + o}')
            a(f'ds_read_b128 v[64:67], v44 offset:{3*MSZ + o}')
            a('s_waitcnt lgkmcnt(0)')
            a('v_mfma_f32_16x16x32_bf16 v[48:51], v[52:55], v[60:63], v[48:51]')
            a('v_mfma_f32_16x16x32_bf16 v[48:51], v[52:55], v[64:67], v[48:51]')
            a('v_mfma_f32_16x16x32_bf16 v[48:51], v[56:59], v[60:63], v[48:51]')
        a('s_nop 15')
        a('v_lshrrev_b32 v46, 4, v41')
        a('v_lshlrev_b32 v46, 8, v46')
        a('v_and_b32 v47, 15, v41')
        a('v_lshl_add_u32 v46, v47, 2, v46')
        a('v_lshl_add_u32 v46, v42, 10, v46')
        a('v_lshl_add_u32 v46, v43, 12, v46')
        a(f'v_add_u32 v46, {KD + 2048*rnd}, v46')
        for r in range(4):
            a(f'ds_write_b32 v46, v{48+r} offset:{64*r}')
    a('s_waitcnt lgkmcnt(0)')
    a('s_barrier')
    a('v_lshlrev_b32 v23, 3, v0')
    for e in range(9):
        a(f'v_sub_u32 v24, {2047 - e}, v23')
        a('v_cvt_f32_u32 v25, v24')
        a('v_bfe_u32 v26, v25, 16, 1')
        a('v_add_u32 v25, v25, v26')
        a('v_add_u32 v25, 0x7fff, v25')
        a('v_and_b32 v25, 0xffff0000, v25')
        a('v_lshrrev_b32 v26, 23, v25')
        a('v_cvt_u32_f32 v27, v25')
        a('v_subrev_u32 v26, 134, v26')
        a('v_max_i32 v26, 0, v26')
        a('v_min_i32 v26, 3, v26')
        a('v_lshrrev_b32 v27, v26, v27')
        a('v_cmp_eq_u32 vcc, 0, v26')
        a('v_subrev_u32 v28, 128, v27')
        a('s_nop 0')
        a('v_cndmask_b32 v27, v28, v27, vcc')
        a('v_and_b32 v27, 255, v27')
        a('v_lshl_add_u32 v27, v26, 8, v27')
        a('v_lshlrev_b32 v27, 2, v27')
        a(f'v_add_u32 v27, {KD}, v27')
        a(f'ds_read_b32 v{70+e}, v27')
        a(f'ds_read_b32 v{80+e}, v27 offset:4096')
    a('s_waitcnt lgkmcnt(0)')
    for e in range(9):
        a(f'v_add_f32 v{70+e}, v{70+e}, v{80+e}')
        a(f'v_add_f32 v{70+e}, v{70+e}, v{70+e}')
    a('v_cmp_eq_u32 vcc, 255, v0')
    a('s_nop 1')
    a('v_cndmask_b32 v78, v78, 0, vcc')
    for e in range(4):
        a(f'v_cvt_pk_bf16_f32 v{56+e}, v{70+2*e}, v{71+2*e}')
        a(f'v_cvt_pk_bf16_f32 v{60+e}, v{71+2*e}, v{72+2*e}')
    a(f's_mul_i32 s4, s3, {KRS}')
    a(f's_add_u32 s5, s4, {WS_KR}')
    a(f's_add_u32 s6, s4, {WS_KR1}')
    a('v_lshl_add_u32 v23, v0, 4, s5')
    a('v_lshl_add_u32 v24, v0, 4, s6')
    a('buffer_store_dwordx4 v[56:59], v23, s[8:11], 0 offen')
    a('buffer_store_dwordx4 v[60:63], v24, s[8:11], 0 offen')
    for r in range(64, 68): a(f'v_mov_b32 v{r}, 0')
    a('v_cmp_gt_u32 vcc, 16, v0')
    a('s_and_saveexec_b64 s[16:17], vcc')
    a('v_add_u32 v23, 4096, v23')
    a('v_add_u32 v24, 4096, v24')
    a('buffer_store_dwordx4 v[64:67], v23, s[8:11], 0 offen')
    a('buffer_store_dwordx4 v[64:67], v24, s[8:11], 0 offen')
    a('s_mov_b64 exec, s[16:17]')
    a.lab('P_end')
    a('s_endpgm')
    return a.text(), KD + 8192
```

```python
from gen import A, srd, f32hex, bf16r, WS_XN, WS_XNT, WS_KR, WS_AT, WS_H, WS_SIZE, LOG2E
from gen3 import stamp
import os
KRS = 4352
GC1 = -2 * 0.7978845608028654 * LOG2E
GC2 = GC1 * 0.044715
NG = 224
CST = 4416
UB = 8 * CST
CONV_LDS = UB + 96 * 80
ASZ, BSZ = 128 * 144, 64 * 320
STG = ASZ + BSZ
GEMM_LDS = 2 * STG

def conv_body(a, chan_sreg):
    srd(a, 12, 48, 512 * 2)
    a(f's_mul_i32 s4, {chan_sreg}, {KRS}')
    a(f's_add_u32 s4, s4, {WS_KR}')
    a(f's_lshl_b32 s5, {chan_sreg}, 12')
    a(f's_add_u32 s6, s5, {WS_XNT}')
    a(f's_add_u32 s7, s5, {WS_AT}')
    a('v_lshlrev_b32 v1, 4, v0')
    a('buffer_load_dwordx4 v[16:19], v1, s[8:11], s4 offen')
    a('buffer_load_dwordx4 v[20:23], v1, s[8:11], s4 offen offset:16')
    a('buffer_load_dwordx4 v[32:35], v1, s[8:11], s6 offen')
    a('v_add_u32 v2, 4096, v1')
    a('v_cmp_gt_u32 vcc, 8, v0')
    a('s_and_saveexec_b64 s[16:17], vcc')
    a('buffer_load_dwordx4 v[24:27], v2, s[8:11], s4 offen')
    a('buffer_load_dwordx4 v[28:31], v2, s[8:11], s4 offen offset:16')
    a('s_mov_b64 exec, s[16:17]')
    a(f's_lshl_b32 s5, {chan_sreg}, 1')
    a('v_mov_b32 v3, s5')
    a('buffer_load_ushort v12, v3, s[12:15], 0 offen')
    for r in range(36, 40): a(f'v_mov_b32 v{r}, 0')
    a('v_cmp_gt_u32 vcc, 160, v0')
    a('s_and_saveexec_b64 s[16:17], vcc')
    a(f'ds_write_b128 v1, v[36:39] offset:{UB}')
    a('s_mov_b64 exec, s[16:17]')
    a('v_lshrrev_b32 v4, 2, v0')
    a('v_mul_u32_u24 v4, 80, v4')
    a('v_and_b32 v5, 3, v0')
    a('v_lshl_add_u32 v4, v5, 4, v4')
    a('v_and_b32 v6, 31, v0')
    a('v_bfe_u32 v7, v0, 5, 1')
    a('v_sub_u32 v8, 7, v6')
    a('v_and_b32 v8, 7, v8')
    a(f'v_mul_u32_u24 v8, {CST}, v8')
    a('v_sub_u32 v9, 2047, v6')
    a('v_lshrrev_b32 v9, 3, v9')
    a('v_add_u32 v9, v9, v7')
    a('v_lshl_add_u32 v8, v9, 4, v8')
    a(f'v_subrev_u32 v8, {64*63}, v8')
    a('v_mul_u32_u24 v9, 80, v6')
    a('v_lshl_add_u32 v9, v7, 4, v9')
    a(f'v_add_u32 v9, {UB - 31*80}, v9')
    for r in range(32): a(f'v_mov_b32 v{64+r}, 0')
    def shifted(D, vaddr):
        d = lambda m: f'v{D+m}'
        a(f'ds_write_b128 {vaddr}, v[{D}:{D+3}]')
        a(f'ds_write_b128 {vaddr}, v[{D+2}:{D+5}] offset:{4*CST}')
        for m in range(4):
            a(f'v_alignbit_b32 v{40+m}, {d(m+1)}, {d(m)}, 16')
            a(f'v_alignbit_b32 v{44+m}, {d(m+2)}, {d(m+1)}, 16')
            a(f'v_alignbit_b32 v{48+m}, {d(m+3)}, {d(m+2)}, 16')
            a(f'v_alignbit_b32 v{52+m}, {d(m+4)}, {d(m+3)}, 16')
            a(f'v_mov_b32 v{56+m}, {d(m+1)}')
            a(f'v_mov_b32 v{60+m}, {d(m+3)}')
        for c, r in ((1, 40), (3, 44), (5, 48), (7, 52), (2, 56), (6, 60)):
            a(f'ds_write_b128 {vaddr}, v[{r}:{r+3}] offset:{c*CST}')
    a('s_waitcnt vmcnt(0)')
    shifted(16, 'v1')
    a(f'ds_write_b128 v4, v[32:35] offset:{UB + 2560}')
    a('v_cmp_gt_u32 vcc, 8, v0')
    a('s_and_saveexec_b64 s[16:17], vcc')
    shifted(24, 'v2')
    a('s_mov_b64 exec, s[16:17]')
    a('v_lshlrev_b32 v12, 16, v12')
    a('v_lshrrev_b32 v1, 6, v0')
    a('s_nop 1')
    a('v_readfirstlane_b32 s18, v1')
    a('s_waitcnt lgkmcnt(0)')
    a('s_barrier')
    if os.environ.get('DBG'):
        a(f's_cmp_lg_u32 {chan_sreg}, 0')
        a('s_cbranch_scc1 C_nodbg0')
        a('v_lshlrev_b32 v50, 4, v0')
        for q in range(11):
            a(f'ds_read_b128 v[52:55], v50 offset:{4096*q}')
            a('s_waitcnt lgkmcnt(0)')
            a(f'v_add_u32 v51, {(21<<20) + 4096*q}, v50')
            a('buffer_store_dwordx4 v[52:55], v51, s[8:11], 0 offen')
        a.lab('C_nodbg0')
    work = {0: [(k, 1) for k in range(0, 12)],
            1: [(k, 1) for k in range(12, 24)],
            2: [(k, 1) for k in range(24, 32)] + [(k, 0) for k in range(32, 40)],
            3: [(k, 0) for k in range(40, 64)]}
    PF = 3
    for w in range(4):
        a.lab(f'C_w{w}')
        if w < 3:
            a(f's_cmp_lg_u32 s18, {w}')
            a(f's_cbranch_scc1 C_w{w+1}')
        seq = [(k, h, both) for (k, both) in work[w] for h in (0, 1)]
        def nread(idx): return 3 if seq[idx][2] else 2
        def rd(idx):
            k, h, both = seq[idx]
            st = 16 + 12 * (idx % 4)
            a(f'ds_read_b128 v[{st}:{st+3}], v8 offset:{64*(63-k)+32*h}')
            a(f'ds_read_b128 v[{st+4}:{st+7}], v9 offset:{80*(63-k)+32*h+2560}')
            if both: a(f'ds_read_b128 v[{st+8}:{st+11}], v9 offset:{80*(63-k)+32*h}')
        for i in range(min(PF, len(seq))): rd(i)
        for idx in range(len(seq)):
            k, h, both = seq[idx]
            st = 16 + 12 * (idx % 4)
            later = sum(nread(j) for j in range(idx + 1, min(idx + PF, len(seq))))
            a(f's_waitcnt lgkmcnt({later})')
            a(f'v_mfma_f32_32x32x16_bf16 v[80:95], v[{st}:{st+3}], v[{st+4}:{st+7}], v[80:95]')
            if both: a(f'v_mfma_f32_32x32x16_bf16 v[64:79], v[{st}:{st+3}], v[{st+8}:{st+11}], v[64:79]')
            if idx + PF < len(seq): rd(idx + PF)
        if w < 3: a('s_branch C_red')
    a.lab('C_red')
    if os.environ.get('DBG'):
        a(f's_cmp_lg_u32 {chan_sreg}, 0')
        a('s_cbranch_scc1 C_nodbg2')
        a('s_nop 15')
        a('v_mov_b32 v52, s18')
        a('v_mov_b32 v53, v8')
        a('v_mov_b32 v54, v9')
        a('v_mov_b32 v55, v83')
        a('v_lshlrev_b32 v50, 4, v0')
        a(f'v_add_u32 v51, {(22<<20)}, v50')
        a('buffer_store_dwordx4 v[52:55], v51, s[8:11], 0 offen')
        a.lab('C_nodbg2')
    a('s_nop 15')
    a('s_barrier')
    a('v_and_b32 v2, 63, v0')
    a('v_lshlrev_b32 v2, 4, v2')
    a('v_lshl_add_u32 v3, v1, 13, v2')
    a('s_cmp_eq_u32 s18, 3')
    a('s_cbranch_scc1 C_skip0')
    for r4 in range(4):
        a(f'ds_write_b128 v3, v[{64+4*r4}:{67+4*r4}] offset:{1024*r4}')
    a.lab('C_skip0')
    for r4 in range(4):
        a(f'ds_write_b128 v3, v[{80+4*r4}:{83+4*r4}] offset:{4096+1024*r4}')
    a('s_waitcnt lgkmcnt(0)')
    a('s_barrier')
    if os.environ.get('DBG'):
        a(f's_cmp_lg_u32 {chan_sreg}, 0')
        a('s_cbranch_scc1 C_nodbg')
        a('v_lshlrev_b32 v50, 4, v0')
        for q in range(8):
            a(f'ds_read_b128 v[52:55], v50 offset:{4096*q}')
            a('s_waitcnt lgkmcnt(0)')
            a(f'v_add_u32 v51, {(20<<20) + 4096*q}, v50')
            a('buffer_store_dwordx4 v[52:55], v51, s[8:11], 0 offen')
        a.lab('C_nodbg')
    a('v_lshrrev_b32 v4, 1, v1')
    a('v_and_b32 v5, 1, v1')
    a('v_lshl_add_u32 v3, v4, 12, v2')
    a('v_lshl_add_u32 v3, v5, 11, v3')
    for src in range(3):
        for q in range(2):
            a(f'ds_read_b128 v[{16+8*src+4*q}:{19+8*src+4*q}], v3 offset:{8192*src+1024*q}')
    a(f'v_mov_b32 v10, {UB}')
    a('v_add_u32 v11, 24576, v3')
    a('v_cmp_eq_u32 vcc, 0, v4')
    a('v_and_b32 v13, 0x3ff, v2')
    a(f'v_add_u32 v10, {UB}, v13')
    a('v_cndmask_b32 v11, v11, v10, vcc')
    for q in range(2):
        a(f'ds_read_b128 v[{40+4*q}:{43+4*q}], v11 offset:{1024*q}')
    a('v_lshl_add_u32 v14, v4, 5, v6')
    a('v_mul_u32_u24 v15, 80, v14')
    a('v_lshl_add_u32 v15, v7, 3, v15')
    a('v_lshl_add_u32 v15, v5, 5, v15')
    for q in range(2):
        a(f'ds_read_b64 v[{48+2*q}:{49+2*q}], v15 offset:{UB + 2560 + 16*q}')
    a('v_lshlrev_b32 v14, 6, v14')
    a('v_lshl_add_u32 v14, v7, 3, v14')
    a('v_lshl_add_u32 v14, v5, 5, v14')
    a('s_waitcnt lgkmcnt(0)')
    for r in range(8):
        a(f'v_add_f32 v{16+r}, v{16+r}, v{24+r}')
        a(f'v_add_f32 v{32+r}, v{32+r}, v{40+r}')
        a(f'v_add_f32 v{16+r}, v{16+r}, v{32+r}')
    for q in range(2):
        for p in range(2):
            u = 48 + 2 * q + p
            y0, y1 = 16 + 4 * q + 2 * p, 17 + 4 * q + 2 * p
            a(f'v_lshlrev_b32 v40, 16, v{u}')
            a(f'v_and_b32 v41, 0xffff0000, v{u}')
            a('v_mul_f32 v40, v40, v12')
            a('v_mul_f32 v41, v41, v12')
            a('v_cvt_pk_bf16_f32 v42, v40, v41')
            a('v_lshlrev_b32 v40, 16, v42')
            a('v_and_b32 v41, 0xffff0000, v42')
            a(f'v_cvt_pk_bf16_f32 v42, v{y0}, v{y1}')
            a('v_lshlrev_b32 v43, 16, v42')
            a('v_and_b32 v44, 0xffff0000, v42')
            a('v_add_f32 v40, v40, v43')
            a('v_add_f32 v41, v41, v44')
            a(f'v_cvt_pk_bf16_f32 v{52+2*q+p}, v40, v41')
        a(f'buffer_store_dwordx2 v[{52+2*q}:{53+2*q}], v14, s[8:11], s7 offen offset:{16*q}')
    a('s_endpgm')

def gemm1_body(a, wg_sreg):
    srd(a, 12, 52, 512 * 1792 * 2)
    srd(a, 16, 54, 1792 * 2)
    a(f's_and_b32 s4, {wg_sreg}, 7')
    a('s_lshl_b32 s4, s4, 1')
    a(f's_bfe_u32 s5, {wg_sreg}, 0x10003')
    a('s_add_u32 s4, s4, s5')
    a(f's_lshr_b32 s5, {wg_sreg}, 4')
    a('v_lshrrev_b32 v1, 3, v0')
    a('v_and_b32 v2, 7, v0')
    a('s_lshl_b32 s6, s4, 17')
    a('v_lshlrev_b32 v3, 10, v1')
    a('v_lshl_add_u32 v3, v2, 4, v3')
    a('v_add_u32 v3, s6, v3')
    a('v_mul_u32_u24 v4, 144, v1')
    a('v_lshl_add_u32 v4, v2, 4, v4')
    a('v_lshrrev_b32 v1, 4, v0')
    a('v_and_b32 v2, 15, v0')
    a('v_mul_u32_u24 v5, 3584, v1')
    a('v_lshl_add_u32 v5, v2, 4, v5')
    a('s_lshl_b32 s7, s5, 8')
    a('v_add_u32 v5, s7, v5')
    a('v_mul_u32_u24 v6, 320, v1')
    a('v_lshl_add_u32 v6, v2, 4, v6')
    a(f'v_add_u32 v6, {ASZ}, v6')
    for q in range(1, 4):
        a(f'v_add_u32 v{8+q}, {32768*q}, v3')
        a(f'v_add_u32 v{11+q}, {16*3584*q}, v5')
    SETS = (96, 128, 160)
    def gload(kt):
        st = SETS[kt % 3]
        a(f's_mov_b32 s20, {kt*128}')
        a(f's_mov_b32 s21, {kt*64*3584}')
        for q in range(4):
            va = 'v3' if q == 0 else f'v{8+q}'
            a(f'buffer_load_dwordx4 v[{st+4*q}:{st+3+4*q}], {va}, s[8:11], s20 offen')
        for q in range(4):
            vb = 'v5' if q == 0 else f'v{11+q}'
            a(f'buffer_load_dwordx4 v[{st+16+4*q}:{st+19+4*q}], {vb}, s[12:15], s21 offen')
    gload(0); gload(1); gload(2)
    a('v_lshrrev_b32 v1, 6, v0')
    a('v_lshrrev_b32 v7, 1, v1')
    a('v_and_b32 v8, 1, v1')
    a('v_and_b32 v15, 31, v0')
    a('v_bfe_u32 v48, v0, 5, 1')
    a('v_lshl_add_u32 v49, v7, 6, v15')
    a('v_mul_u32_u24 v49, 144, v49')
    a('v_lshl_add_u32 v49, v48, 4, v49')
    a('v_bfe_u32 v50, v0, 2, 2')
    a('v_lshl_add_u32 v50, v48, 3, v50')
    a('v_mul_u32_u24 v50, 320, v50')
    a('v_bfe_u32 v51, v0, 4, 1')
    a('v_lshlrev_b32 v51, 5, v51')
    a('v_lshl_add_u32 v51, v8, 7, v51')
    a('v_and_b32 v52, 3, v0')
    a('v_lshl_add_u32 v51, v52, 3, v51')
    a('v_add_u32 v50, v50, v51')
    a(f'v_add_u32 v50, {ASZ}, v50')
    a('v_lshlrev_b32 v53, 7, v8')
    a('v_lshl_add_u32 v53, v48, 3, v53')
    a('v_add_u32 v53, s7, v53')
    for nt in range(2):
        for rq in range(4):
            a(f'buffer_load_dwordx2 v[{56+8*nt+2*rq}:{57+8*nt+2*rq}], v53, s[16:19], 0 offen offset:{64*nt+16*rq}')
    for r in range(64): a(f'v_mov_b32 v{192+r}, 0')
    def lwrite(kt):
        st = SETS[kt % 3]; buf = kt & 1
        for q in range(4):
            a(f'ds_write_b128 v4, v[{st+4*q}:{st+3+4*q}] offset:{buf*STG + 32*144*q}')
        for q in range(4):
            a(f'ds_write_b128 v6, v[{st+16+4*q}:{st+19+4*q}] offset:{buf*STG + 16*320*q}')
    def frd(buf, kk, fs):
        fa = 16 + 16 * fs
        for mt in range(2):
            a(f'ds_read_b128 v[{fa+4*mt}:{fa+3+4*mt}], v49 offset:{buf*STG + mt*32*144 + kk*32}')
        for nt in range(2):
            for u in range(2):
                a(f'ds_read_b64_tr_b16 v[{fa+8+4*nt+2*u}:{fa+9+4*nt+2*u}], v50 offset:{buf*STG + (kk*16+4*u)*320 + nt*64}')
    def fmma(fs):
        fa = 16 + 16 * fs
        for mt in range(2):
            for nt in range(2):
                acc = 192 + 16 * (2 * mt + nt)
                a(f'v_mfma_f32_32x32x16_bf16 v[{acc}:{acc+15}], v[{fa+8+4*nt}:{fa+11+4*nt}], v[{fa+4*mt}:{fa+3+4*mt}], v[{acc}:{acc+15}]')
    a('s_waitcnt vmcnt(24)')
    lwrite(0)
    a('s_waitcnt lgkmcnt(0)')
    a('s_barrier')
    for kt in range(8):
        buf = kt & 1
        frd(buf, 0, 0)
        if kt < 7:
            newer = (8 if kt + 2 < 8 else 0) + (8 if kt == 0 else 0)
            a(f's_waitcnt vmcnt({newer})')
            lwrite(kt + 1)
            if kt + 3 < 8: gload(kt + 3)
        nl = 8 if kt < 7 else 0
        for kk in range(4):
            if kk < 3:
                frd(buf, kk + 1, (kk + 1) & 1)
                a('s_waitcnt lgkmcnt(6)')
            else:
                a('s_waitcnt lgkmcnt(0)')
            fmma(kk & 1)
        if kt < 7:
            a('s_barrier')
    a(f'v_mov_b32 v16, {f32hex(GC1)}')
    a(f'v_mov_b32 v17, {f32hex(GC1)}')
    a(f's_mov_b32 s22, {f32hex(GC2)}')
    a(f's_mov_b32 s23, {f32hex(GC2)}')
    a('v_mov_b32 v18, 1.0')
    a('v_mov_b32 v19, 1.0')
    a('v_lshl_add_u32 v20, v7, 6, v15')
    a('s_lshl_b32 s6, s4, 7')
    a('v_add_u32 v20, s6, v20')
    a('v_mul_u32_u24 v20, 3584, v20')
    a('v_add_u32 v20, v20, v53')
    a(f'v_add_u32 v20, {WS_H}, v20')
    a(f'v_add_u32 v21, {32*3584}, v20')
    a('s_waitcnt vmcnt(0)')
    for i in range(16):
        a(f'v_lshlrev_b32 v{96+2*i}, 16, v{56+i}')
        a(f'v_and_b32 v{97+2*i}, 0xffff0000, v{56+i}')
    a('s_nop 7')
    for mt in range(2):
        for nt in range(2):
            acc = 192 + 16 * (2 * mt + nt)
            for rq in range(4):
                regs = []
                for p in range(2):
                    b = 96 + 16 * nt + 4 * rq + 2 * p
                    y0 = acc + 4 * rq + 2 * p
                    P = 24 + 4 * p; Q = 26 + 4 * p; T = 32 + p
                    regs.append((b, y0, P, Q, T))
                for (b, y0, P, Q, T) in regs:
                    a(f'v_cvt_pk_bf16_f32 v{T}, v{y0}, v{y0+1}')
                for (b, y0, P, Q, T) in regs:
                    a(f'v_lshlrev_b32 v{P}, 16, v{T}')
                    a(f'v_and_b32 v{P+1}, 0xffff0000, v{T}')
                for (b, y0, P, Q, T) in regs:
                    a(f'v_pk_add_f32 v[{P}:{P+1}], v[{P}:{P+1}], v[{b}:{b+1}]')
                for (b, y0, P, Q, T) in regs:
                    a(f'v_cvt_pk_bf16_f32 v{T}, v{P}, v{P+1}')
                for (b, y0, P, Q, T) in regs:
                    a(f'v_lshlrev_b32 v{P}, 16, v{T}')
                    a(f'v_and_b32 v{P+1}, 0xffff0000, v{T}')
                for (b, y0, P, Q, T) in regs:
                    a(f'v_pk_mul_f32 v[{Q}:{Q+1}], v[{P}:{P+1}], v[{P}:{P+1}]')
                for (b, y0, P, Q, T) in regs:
                    a(f'v_pk_fma_f32 v[{Q}:{Q+1}], v[{Q}:{Q+1}], s[22:23], v[16:17]')
                for (b, y0, P, Q, T) in regs:
                    a(f'v_pk_mul_f32 v[{Q}:{Q+1}], v[{Q}:{Q+1}], v[{P}:{P+1}]')
                for (b, y0, P, Q, T) in regs:
                    a(f'v_exp_f32 v{Q}, v{Q}')
                    a(f'v_exp_f32 v{Q+1}, v{Q+1}')
                for (b, y0, P, Q, T) in regs:
                    a(f'v_pk_add_f32 v[{Q}:{Q+1}], v[{Q}:{Q+1}], v[18:19]')
                for (b, y0, P, Q, T) in regs:
                    a(f'v_rcp_f32 v{Q}, v{Q}')
                    a(f'v_rcp_f32 v{Q+1}, v{Q+1}')
                for (b, y0, P, Q, T) in regs:
                    a(f'v_pk_mul_f32 v[{P}:{P+1}], v[{P}:{P+1}], v[{Q}:{Q+1}]')
                for p, (b, y0, P, Q, T) in enumerate(regs):
                    a(f'v_cvt_pk_bf16_f32 v{34 + 2*(rq&1) + p}, v{P}, v{P+1}')
                dst = 'v20' if mt == 0 else 'v21'
                o = 34 + 2 * (rq & 1)
                a(f'buffer_store_dwordx2 v[{o}:{o+1}], {dst}, s[8:11], 0 offen offset:{64*nt+16*rq}')

def gen_mid2():
    a = A()
    a(f's_cmp_ge_u32 s2, {NG + 512}')
    a('s_cbranch_scc1 M_end')
    a('s_load_dwordx16 s[36:51], s[0:1], 0')
    a('s_load_dwordx8 s[52:59], s[0:1], 64')
    a('s_load_dwordx2 s[60:61], s[0:1], 112')
    a('s_waitcnt lgkmcnt(0)')
    srd(a, 8, 60, WS_SIZE)
    a(f's_cmp_ge_u32 s2, {NG}')
    a('s_cbranch_scc0 ' + ('M_end' if os.environ.get('SKIP') == 'gemm' else 'M_gemm'))
    if os.environ.get('SKIP') == 'conv': a('s_branch M_end')
    a(f's_sub_u32 s3, s2, {NG}')
    conv_body(a, 's3')
    a.lab('M_gemm')
    gemm1_body(a, 's2')
    a.lab('M_end')
    a('s_endpgm')
    return a.text(), max(CONV_LDS, GEMM_LDS)

if __name__ == '__main__':
    import sys
    from gen import build
    from gen4 import gen_prep2
    from gen3 import gen_fin2
    t, l = gen_prep2()
    m, ml = gen_mid2()
    ks = [('prep_kernel', 576, l, t, 128), ('mid_kernel', NG + 512, ml, m, 256),
          ('fin_kernel', 256, 4 * (64 * 144 + 64 * 192), gen_fin2(), 256)]
    open(sys.argv[1] if len(sys.argv) > 1 else 'k.s', 'w').write(build(ks))
```

```python
from gen import A, srd, f32hex, bf16r, WS_XN, WS_XNT, WS_KR, WS_AT, WS_H, WS_SIZE, LOG2E

import os
STAMP = os.environ.get('STAMP','')
def stamp(a, idx, r0=250, wg=0):
    if not STAMP: return
    a('s_memtime s[90:91]')
    a('s_waitcnt lgkmcnt(0)')
    a(f'v_mov_b32 v{r0}, s90')
    a(f'v_mov_b32 v{r0+1}, {idx*4}')
    a('s_mov_b64 s[94:95], exec')
    a('v_cmp_eq_u32 vcc, 0, v0')
    a(f's_cmp_eq_u32 s2, {wg}')
    a('s_cselect_b64 s[92:93], vcc, 0')
    a('s_mov_b64 exec, s[92:93]')
    a(f'buffer_store_dword v{r0}, v{r0+1}, s[84:87], 0 offen')
    a('s_mov_b64 exec, s[94:95]')

def gen_fin2():
    a = A()
    a('s_cmp_ge_u32 s2, 256')
    a('s_cbranch_scc1 F_end')
    a('s_load_dwordx2 s[36:37], s[0:1], 0')
    a('s_load_dwordx8 s[52:59], s[0:1], 64')
    a('s_load_dwordx4 s[60:63], s[0:1], 96')
    a('s_load_dwordx2 s[64:65], s[0:1], 112')
    a('s_waitcnt lgkmcnt(0)')
    srd(a, 8, 64, WS_SIZE)
    srd(a, 12, 56, 1792 * 512 * 2)
    srd(a, 16, 58, 512 * 2)
    srd(a, 20, 36, 2048 * 512 * 2)
    srd(a, 24, 60, 2048 * 512 * 2)
    srd(a, 84, 62, 256)
    stamp(a, 0)
    a('s_and_b32 s4, s2, 7')
    a('s_lshl_b32 s4, s4, 2')
    a('s_bfe_u32 s5, s2, 0x20003')
    a('s_add_u32 s4, s4, s5')
    a('s_lshr_b32 s5, s2, 5')
    ASZ, BSZ = 64 * 144, 64 * 192
    WSZ = ASZ + BSZ
    a('v_lshrrev_b32 v1, 6, v0')
    a('v_and_b32 v2, 63, v0')
    a('v_readfirstlane_b32 s28, v1')
    a('v_lshrrev_b32 v9, 3, v2')
    a('v_and_b32 v10, 7, v2')
    a(f's_mul_i32 s6, s4, {64*3584}')
    a(f's_add_u32 s6, s6, {WS_H}')
    a('v_mul_u32_u24 v3, 3584, v9')
    a('v_lshl_add_u32 v3, v10, 4, v3')
    a('v_add_u32 v3, s6, v3')
    a(f's_mul_i32 s29, s28, {WSZ}')
    a('v_mul_u32_u24 v4, 144, v9')
    a('v_lshl_add_u32 v4, v10, 4, v4')
    a('v_add_u32 v4, s29, v4')
    a('v_lshlrev_b32 v5, 10, v9')
    a('v_lshl_add_u32 v5, v10, 4, v5')
    a('s_lshl_b32 s7, s5, 7')
    a('v_add_u32 v5, s7, v5')
    a('v_mul_u32_u24 v6, 192, v9')
    a('v_lshl_add_u32 v6, v10, 4, v6')
    a(f'v_add_u32 v6, {ASZ}, v6')
    a('v_add_u32 v6, s29, v6')
    a('v_and_b32 v9, 31, v2')
    a('v_bfe_u32 v10, v2, 5, 1')
    a('v_mul_u32_u24 v11, 144, v9')
    a('v_lshl_add_u32 v11, v10, 4, v11')
    a('v_add_u32 v11, s29, v11')
    a('v_bfe_u32 v12, v2, 2, 2')
    a('v_lshl_add_u32 v12, v10, 3, v12')
    a('v_mul_u32_u24 v12, 192, v12')
    a('v_bfe_u32 v13, v2, 4, 1')
    a('v_lshlrev_b32 v13, 5, v13')
    a('v_and_b32 v14, 3, v2')
    a('v_lshl_add_u32 v13, v14, 3, v13')
    a('v_add_u32 v12, v12, v13')
    a(f'v_add_u32 v12, {ASZ}, v12')
    a('v_add_u32 v12, s29, v12')
    for r in range(64): a(f'v_mov_b32 v{64+r}, 0')
    def gload(st, i):
        a(f's_add_u32 s30, s28, {4*i}')
        a('s_lshl_b32 s31, s30, 16')
        a('s_lshl_b32 s30, s30, 7')
        for q in range(8):
            a(f'v_add_u32 v15, {8*3584*q}, v3')
            a(f'buffer_load_dwordx4 v[{st+4*q}:{st+3+4*q}], v15, s[8:11], s30 offen')
        for q in range(8):
            a(f'buffer_load_dwordx4 v[{st+32+4*q}:{st+35+4*q}], v5, s[12:15], s31 offen offset:{0}' if q == 0 else
              f'buffer_load_dwordx4 v[{st+32+4*q}:{st+35+4*q}], v15, s[12:15], s31 offen')
            if q < 7: a(f'v_add_u32 v15, {8*1024*(q+1)}, v5')
    def lwrite(st):
        for q in range(8):
            a(f'ds_write_b128 v4, v[{st+4*q}:{st+3+4*q}] offset:{8*144*q}')
        for q in range(8):
            a(f'ds_write_b128 v6, v[{st+32+4*q}:{st+35+4*q}] offset:{8*192*q}')
    def compute():
        for kp in range(2):
            for kk2 in range(2):
                kk = 2 * kp + kk2
                fa = 16 + 16 * kk2
                for mt in range(2):
                    a(f'ds_read_b128 v[{fa+4*mt}:{fa+3+4*mt}], v11 offset:{mt*32*144 + kk*32}')
                for nt in range(2):
                    for u in range(2):
                        a(f'ds_read_b64_tr_b16 v[{fa+8+4*nt+2*u}:{fa+9+4*nt+2*u}], v12 offset:{(kk*16+4*u)*192 + nt*64}')
            for kk2 in range(2):
                fa = 16 + 16 * kk2
                a(f's_waitcnt lgkmcnt({6*(1-kk2)})')
                for mt in range(2):
                    for nt in range(2):
                        acc = 64 + 16 * (2 * mt + nt)
                        a(f'v_mfma_f32_32x32x16_bf16 v[{acc}:{acc+15}], v[{fa+8+4*nt}:{fa+11+4*nt}], v[{fa+4*mt}:{fa+3+4*mt}], v[{acc}:{acc+15}]')
    SET = (128, 192)
    gload(SET[0], 0)
    gload(SET[1], 1)
    stamp(a, 1)
    for i in range(7):
        a(f's_waitcnt vmcnt({16 if i < 6 else 0})')
        stamp(a, 2+i)
        lwrite(SET[i % 2])
        a('s_waitcnt lgkmcnt(0)')
        if i + 2 < 7: gload(SET[i % 2], i + 2)
        compute()
    stamp(a, 9)
    a('s_nop 7')
    a('s_nop 7')
    a('s_barrier')
    a('v_lshlrev_b32 v16, 4, v2')
    a('v_lshl_add_u32 v17, v1, 14, v16')
    for r4 in range(16):
        a(f'ds_write_b128 v17, v[{64+4*r4}:{67+4*r4}] offset:{1024*r4}')
    a('s_waitcnt lgkmcnt(0)')
    a('s_barrier')
    a('v_lshl_add_u32 v17, v1, 12, v16')
    for src in range(4):
        for r4 in range(4):
            a(f'ds_read_b128 v[{128+16*src+4*r4}:{131+16*src+4*r4}], v17 offset:{16384*src + 1024*r4}')
    a('s_waitcnt lgkmcnt(0)')
    for r in range(16):
        a(f'v_add_f32 v{128+r}, v{128+r}, v{144+r}')
        a(f'v_add_f32 v{160+r}, v{160+r}, v{176+r}')
        a(f'v_add_f32 v{64+r}, v{128+r}, v{160+r}')
    stamp(a, 10)
    a('v_lshrrev_b32 v7, 1, v1')
    a('v_and_b32 v8, 1, v1')
    a('v_lshl_add_u32 v17, v7, 5, v9')
    a('s_lshl_b32 s6, s4, 6')
    a('v_add_u32 v17, s6, v17')
    a('v_lshlrev_b32 v16, 6, v8')
    a('v_lshl_add_u32 v16, v10, 3, v16')
    a('v_add_u32 v16, s7, v16')
    a('v_lshl_add_u32 v18, v17, 10, v16')
    a('v_lshlrev_b32 v19, 11, v16')
    a('v_lshl_add_u32 v19, v17, 1, v19')
    a(f'v_add_u32 v19, {WS_AT}, v19')
    for rq in range(4):
        a(f'buffer_load_dwordx2 v[{32+2*rq}:{33+2*rq}], v16, s[16:19], 0 offen offset:{16*rq}')
        a(f'buffer_load_dwordx2 v[{40+2*rq}:{41+2*rq}], v18, s[20:23], 0 offen offset:{16*rq}')
    for rq in range(4):
        for i in range(4):
            a(f'v_add_u32 v20, {(8*rq+i)*4096}, v19')
            a(f'buffer_load_ushort v{96+4*rq+i}, v20, s[8:11], 0 offen')
    a('s_waitcnt vmcnt(0)')
    for rq in range(4):
        for p in range(2):
            y0, y1 = 64 + 4 * rq + 2 * p, 65 + 4 * rq + 2 * p
            b, x = 32 + 2 * rq + p, 40 + 2 * rq + p
            a0, a1 = 96 + 4 * rq + 2 * p, 97 + 4 * rq + 2 * p
            a(f'v_cvt_pk_bf16_f32 v20, v{y0}, v{y1}')
            a('v_lshlrev_b32 v21, 16, v20')
            a('v_and_b32 v22, 0xffff0000, v20')
            a(f'v_lshlrev_b32 v23, 16, v{b}')
            a(f'v_and_b32 v24, 0xffff0000, v{b}')
            a('v_add_f32 v21, v21, v23')
            a('v_add_f32 v22, v22, v24')
            a('v_cvt_pk_bf16_f32 v20, v21, v22')
            a('v_lshlrev_b32 v21, 16, v20')
            a('v_and_b32 v22, 0xffff0000, v20')
            a(f'v_lshlrev_b32 v23, 16, v{x}')
            a(f'v_and_b32 v24, 0xffff0000, v{x}')
            a(f'v_lshlrev_b32 v25, 16, v{a0}')
            a(f'v_lshlrev_b32 v26, 16, v{a1}')
            a('v_add_f32 v23, v23, v25')
            a('v_add_f32 v24, v24, v26')
            a('v_cvt_pk_bf16_f32 v20, v23, v24')
            a('v_lshlrev_b32 v23, 16, v20')
            a('v_and_b32 v24, 0xffff0000, v20')
            a('v_add_f32 v23, v23, v21')
            a('v_add_f32 v24, v24, v22')
            a(f'v_cvt_pk_bf16_f32 v{28+p}, v23, v24')
        a(f'buffer_store_dwordx2 v[28:29], v18, s[24:27], 0 offen offset:{16*rq}')
    a('s_waitcnt vmcnt(0)')
    stamp(a, 11)
    a.lab('F_end')
    a('s_endpgm')
    return a.text()
```

```python
from gen import A, srd, f32hex, WS_XN, WS_H, WS_SIZE, LOG2E
from gen3 import stamp
GC1 = -2 * 0.7978845608028654 * LOG2E
GC2 = GC1 * 0.044715
import os
GW = 0 if os.environ.get('STAMP')!='conv' else 99999
STG = 16384
GEMM_LDS = 3 * STG

def gemm1_body(a, wg_sreg):
    srd(a, 12, 52, 512 * 1792 * 2)
    srd(a, 16, 54, 1792 * 2)
    a(f's_and_b32 s4, {wg_sreg}, 7')
    a('s_lshl_b32 s4, s4, 1')
    a(f's_bfe_u32 s5, {wg_sreg}, 0x10003')
    a('s_add_u32 s4, s4, s5')
    a(f's_lshr_b32 s5, {wg_sreg}, 4')
    a('s_lshl_b32 s6, s4, 17')
    a('s_lshl_b32 s7, s5, 8')
    a('v_lshrrev_b32 v1, 2, v0')
    a('v_and_b32 v2, 3, v0')
    a('v_lshlrev_b32 v3, 10, v1')
    a('v_lshl_add_u32 v3, v2, 4, v3')
    a('v_add_u32 v3, s6, v3')
    a('v_add_u32 v9, 65536, v3')
    a('v_bfe_u32 v4, v1, 2, 2')
    a('v_xor_b32 v4, v4, v2')
    a('v_lshlrev_b32 v4, 4, v4')
    a('v_lshl_add_u32 v4, v1, 6, v4')
    a('v_lshrrev_b32 v1, 4, v0')
    a('v_and_b32 v2, 15, v0')
    a('v_mul_u32_u24 v5, 3584, v1')
    a('v_lshl_add_u32 v5, v2, 4, v5')
    a('v_add_u32 v5, s7, v5')
    a(f'v_add_u32 v10, {16*3584}, v5')
    a('v_lshrrev_b32 v6, 2, v2')
    a('v_and_b32 v7, 3, v1')
    a('v_xor_b32 v6, v6, v7')
    a('v_lshlrev_b32 v6, 6, v6')
    a('v_and_b32 v7, 3, v2')
    a('v_lshl_add_u32 v6, v7, 4, v6')
    a('v_lshl_add_u32 v6, v1, 8, v6')
    a('v_add_u32 v6, 8192, v6')
    a('v_lshrrev_b32 v1, 6, v0')
    a('v_lshrrev_b32 v7, 1, v1')
    a('v_and_b32 v8, 1, v1')
    a('v_and_b32 v15, 31, v0')
    a('v_bfe_u32 v48, v0, 5, 1')
    a('v_lshlrev_b32 v53, 7, v8')
    a('v_lshl_add_u32 v53, v48, 3, v53')
    a('v_add_u32 v53, s7, v53')
    stamp(a, 0, 54, GW)
    NS = 6
    def gload(kt):
        st = 96 + 16 * (kt % NS)
        a(f's_mov_b32 s20, {kt*64}')
        a(f's_mov_b32 s21, {kt*32*3584}')
        return [f'buffer_load_dwordx4 v[{st}:{st+3}], v3, s[8:11], s20 offen',
                f'buffer_load_dwordx4 v[{st+4}:{st+7}], v9, s[8:11], s20 offen',
                f'buffer_load_dwordx4 v[{st+8}:{st+11}], v5, s[12:15], s21 offen',
                f'buffer_load_dwordx4 v[{st+12}:{st+15}], v10, s[12:15], s21 offen']
    for kt in range(2):
        for x in gload(kt): a(x)
    for nt in range(2):
        for rq in range(4):
            a(f'buffer_load_dwordx2 v[{56+8*nt+2*rq}:{57+8*nt+2*rq}], v53, s[16:19], 0 offen offset:{64*nt+16*rq}')
    for kt in range(2, NS):
        for x in gload(kt): a(x)
    a('v_lshl_add_u32 v49, v7, 6, v15')
    a('v_bfe_u32 v50, v15, 2, 2')
    a('v_xor_b32 v50, v50, v48')
    a('v_lshlrev_b32 v50, 4, v50')
    a('v_lshl_add_u32 v49, v49, 6, v50')
    a('v_xor_b32 v11, 32, v49')
    a('v_bfe_u32 v50, v0, 2, 2')
    a('v_lshl_add_u32 v51, v48, 3, v50')
    a('v_lshlrev_b32 v51, 8, v51')
    a('v_lshlrev_b32 v52, 1, v8')
    a('v_xor_b32 v52, v52, v50')
    a('v_lshl_add_u32 v51, v52, 6, v51')
    a('v_bfe_u32 v52, v0, 4, 1')
    a('v_lshl_add_u32 v51, v52, 5, v51')
    a('v_and_b32 v52, 3, v0')
    a('v_lshl_add_u32 v51, v52, 3, v51')
    a('v_add_u32 v50, 8192, v51')
    a('v_xor_b32 v12, 64, v50')
    for r in range(64): a(f'v_mov_b32 v{192+r}, 0')
    def lwrite(kt):
        st = 96 + 16 * (kt % NS); sb = (kt % 3) * STG
        return [f'ds_write_b128 v4, v[{st}:{st+3}] offset:{sb}',
                f'ds_write_b128 v4, v[{st+4}:{st+7}] offset:{sb+4096}',
                f'ds_write_b128 v6, v[{st+8}:{st+11}] offset:{sb}',
                f'ds_write_b128 v6, v[{st+12}:{st+15}] offset:{sb+4096}']
    def frd(kt, kk, fs):
        fa = 16 + 16 * fs; sb = (kt % 3) * STG
        va = 'v49' if kk == 0 else 'v11'
        L = []
        for mt in range(2):
            L.append(f'ds_read_b128 v[{fa+4*mt}:{fa+3+4*mt}], {va} offset:{sb + mt*2048}')
        for nt in range(2):
            vb = 'v50' if nt == 0 else 'v12'
            for u in range(2):
                L.append(f'ds_read_b64_tr_b16 v[{fa+8+4*nt+2*u}:{fa+9+4*nt+2*u}], {vb} offset:{sb + (kk*16+4*u)*256}')
        return L
    def mm(fs, j):
        fa = 16 + 16 * fs
        mt, nt = j >> 1, j & 1
        acc = 192 + 16 * (2 * mt + nt)
        return f'v_mfma_f32_32x32x16_bf16 v[{acc}:{acc+15}], v[{fa+8+4*nt}:{fa+11+4*nt}], v[{fa+4*mt}:{fa+3+4*mt}], v[{acc}:{acc+15}]'
    a(f's_waitcnt vmcnt({8 + 4*(NS-2) + 4})')
    stamp(a, 1, 54, GW)
    for x in lwrite(0): a(x)
    a(f's_waitcnt vmcnt({8 + 4*(NS-2)})')
    for x in lwrite(1): a(x)
    a('s_waitcnt lgkmcnt(0)')
    a('s_barrier')
    for x in frd(0, 0, 0): a(x)
    NT = 16
    for kt in range(NT):
        if kt % 2 == 0: stamp(a, 2 + kt // 2, 54, GW)
        W = lwrite(kt + 2) if kt + 2 < NT else []
        G = gload(kt + NS) if kt + NS < NT else []
        F1 = frd(kt, 1, 1)
        F0 = frd(kt + 1, 0, 0) if kt + 1 < NT else []
        a('s_waitcnt lgkmcnt(0)')
        a(mm(0, 0))
        for x in F1[:3]: a(x)
        a(mm(0, 1))
        for x in F1[3:]: a(x)
        if W:
            newer = 4 * (min(NT - 1, kt + NS - 1) - (kt + 2))
            a(f's_waitcnt vmcnt({newer})')
            for x in W[:2]: a(x)
        a(mm(0, 2))
        for x in W[2:]: a(x)
        a(mm(0, 3))
        a(f's_waitcnt lgkmcnt({len(W)})')
        a(mm(1, 0))
        for x in G[:2]: a(x)
        a(mm(1, 1))
        for x in G[2:]: a(x)
        for x in F0[:3]: a(x)
        a(mm(1, 2))
        for x in F0[3:]: a(x)
        a(mm(1, 3))
        if kt + 1 < NT:
            a(f's_waitcnt lgkmcnt({len(F0)})')
            a('s_barrier')
    stamp(a, 10, 54, GW)
    a(f'v_mov_b32 v16, {f32hex(GC1)}')
    a(f'v_mov_b32 v17, {f32hex(GC1)}')
    a(f's_mov_b32 s22, {f32hex(GC2)}')
    a(f's_mov_b32 s23, {f32hex(GC2)}')
    a('v_mov_b32 v18, 1.0')
    a('v_mov_b32 v19, 1.0')
    a('v_lshl_add_u32 v20, v7, 6, v15')
    a('v_mul_u32_u24 v20, 272, v20')
    a('v_lshl_add_u32 v20, v8, 7, v20')
    a('v_lshl_add_u32 v20, v48, 3, v20')
    for i in range(16):
        a(f'v_lshlrev_b32 v{96+2*i}, 16, v{56+i}')
        a(f'v_and_b32 v{97+2*i}, 0xffff0000, v{56+i}')
    a('s_barrier')
    for mt in range(2):
        for nt in range(2):
            acc = 192 + 16 * (2 * mt + nt)
            for rq in range(4):
                regs = []
                for p in range(2):
                    b = 96 + 16 * nt + 4 * rq + 2 * p
                    y0 = acc + 4 * rq + 2 * p
                    P = 24 + 4 * p; Q = 26 + 4 * p; T = 32 + p
                    regs.append((b, y0, P, Q, T))
                for (b, y0, P, Q, T) in regs:
                    a(f'v_cvt_pk_bf16_f32 v{T}, v{y0}, v{y0+1}')
                for (b, y0, P, Q, T) in regs:
                    a(f'v_lshlrev_b32 v{P}, 16, v{T}')
                    a(f'v_and_b32 v{P+1}, 0xffff0000, v{T}')
                for (b, y0, P, Q, T) in regs:
                    a(f'v_pk_add_f32 v[{P}:{P+1}], v[{P}:{P+1}], v[{b}:{b+1}]')
                for (b, y0, P, Q, T) in regs:
                    a(f'v_cvt_pk_bf16_f32 v{T}, v{P}, v{P+1}')
                for (b, y0, P, Q, T) in regs:
                    a(f'v_lshlrev_b32 v{P}, 16, v{T}')
                    a(f'v_and_b32 v{P+1}, 0xffff0000, v{T}')
                for (b, y0, P, Q, T) in regs:
                    a(f'v_pk_mul_f32 v[{Q}:{Q+1}], v[{P}:{P+1}], v[{P}:{P+1}]')
                for (b, y0, P, Q, T) in regs:
                    a(f'v_pk_fma_f32 v[{Q}:{Q+1}], v[{Q}:{Q+1}], s[22:23], v[16:17]')
                for (b, y0, P, Q, T) in regs:
                    a(f'v_pk_mul_f32 v[{Q}:{Q+1}], v[{Q}:{Q+1}], v[{P}:{P+1}]')
                for (b, y0, P, Q, T) in regs:
                    a(f'v_exp_f32 v{Q}, v{Q}')
                    a(f'v_exp_f32 v{Q+1}, v{Q+1}')
                for (b, y0, P, Q, T) in regs:
                    a(f'v_pk_add_f32 v[{Q}:{Q+1}], v[{Q}:{Q+1}], v[18:19]')
                for (b, y0, P, Q, T) in regs:
                    a(f'v_rcp_f32 v{Q}, v{Q}')
                    a(f'v_rcp_f32 v{Q+1}, v{Q+1}')
                for (b, y0, P, Q, T) in regs:
                    a(f'v_pk_mul_f32 v[{P}:{P+1}], v[{P}:{P+1}], v[{Q}:{Q+1}]')
                o = 34 + 2 * (rq & 1)
                for p, (b, y0, P, Q, T) in enumerate(regs):
                    a(f'v_cvt_pk_bf16_f32 v{o + p}, v{P}, v{P+1}')
                a(f'ds_write_b64 v20, v[{o}:{o+1}] offset:{mt*32*272 + 64*nt + 16*rq}')
    a('s_waitcnt lgkmcnt(0)')
    a('s_barrier')
    a('v_lshrrev_b32 v1, 4, v0')
    a('v_and_b32 v2, 15, v0')
    a('v_mul_u32_u24 v21, 272, v1')
    a('v_lshl_add_u32 v21, v2, 4, v21')
    a('s_lshl_b32 s6, s4, 7')
    a('v_add_u32 v22, s6, v1')
    a('v_mul_u32_u24 v22, 3584, v22')
    a('v_lshl_add_u32 v22, v2, 4, v22')
    a('v_add_u32 v22, s7, v22')
    a(f'v_add_u32 v22, {WS_H}, v22')
    for i in range(8):
        a(f'ds_read_b128 v[{96+4*i}:{99+4*i}], v21 offset:{16*272*i}')
    for i in range(8):
        a(f's_mov_b32 s20, {16*3584*i}')
        a(f's_waitcnt lgkmcnt({7-i})')
        a(f'buffer_store_dwordx4 v[{96+4*i}:{99+4*i}], v22, s[8:11], s20 offen')
```

```python
from gen import A, srd, f32hex, WS_AT, WS_H, WS_SIZE
from gen3 import stamp
import os
WST = 8192
ATB = 4 * 2 * WST
FIN_LDS = ATB + 64 * 192

def gen_fin3():
    a = A()
    a('s_cmp_ge_u32 s2, 256')
    a('s_cbranch_scc1 F_end')
    a('s_load_dwordx2 s[36:37], s[0:1], 0')
    a('s_load_dwordx8 s[52:59], s[0:1], 64')
    a('s_load_dwordx4 s[60:63], s[0:1], 96')
    a('s_load_dwordx2 s[64:65], s[0:1], 112')
    a('s_and_b32 s4, s2, 7')
    a('s_lshl_b32 s4, s4, 2')
    a('s_bfe_u32 s5, s2, 0x20003')
    a('s_add_u32 s4, s4, s5')
    a('s_lshr_b32 s5, s2, 5')
    a('v_lshrrev_b32 v1, 6, v0')
    a('v_and_b32 v2, 63, v0')
    a('s_waitcnt lgkmcnt(0)')
    a('v_readfirstlane_b32 s28, v1')
    srd(a, 8, 64, WS_SIZE)
    srd(a, 12, 56, 1792 * 512 * 2)
    srd(a, 16, 58, 512 * 2)
    srd(a, 20, 36, 2048 * 512 * 2)
    srd(a, 24, 60, 2048 * 512 * 2)
    srd(a, 84, 62, 256)
    stamp(a, 0)
    a('v_and_b32 v9, 31, v2')
    a('v_bfe_u32 v10, v2, 5, 1')
    a('v_lshrrev_b32 v7, 1, v1')
    a('v_and_b32 v8, 1, v1')
    a('v_lshl_add_u32 v17, v7, 5, v9')
    a('s_lshl_b32 s6, s4, 6')
    a('s_lshl_b32 s7, s5, 7')
    a('v_add_u32 v17, s6, v17')
    a('v_lshlrev_b32 v16, 6, v8')
    a('v_lshl_add_u32 v16, v10, 3, v16')
    a('v_add_u32 v16, s7, v16')
    a('v_lshl_add_u32 v18, v17, 10, v16')
    a('v_lshrrev_b32 v3, 3, v0')
    a('v_and_b32 v4, 7, v0')
    a('v_lshlrev_b32 v5, 12, v3')
    a('v_lshl_add_u32 v5, v4, 4, v5')
    a('s_lshl_b32 s8, s5, 18') if False else None
    a('s_lshl_b32 s30, s5, 18')
    a('s_lshl_b32 s31, s4, 7')
    a('s_add_u32 s30, s30, s31')
    a(f's_add_u32 s30, s30, {WS_AT}')
    a(f's_add_u32 s31, s30, {32*4096}')
    a('buffer_load_dwordx4 v[224:227], v5, s[8:11], s30 offen')
    a('buffer_load_dwordx4 v[228:231], v5, s[8:11], s31 offen')
    a('v_mul_u32_u24 v19, 192, v3')
    a('v_lshl_add_u32 v19, v4, 4, v19')
    for rq in range(4):
        a(f'buffer_load_dwordx2 v[{232+2*rq}:{233+2*rq}], v16, s[16:19], 0 offen offset:{16*rq}')
        a(f'buffer_load_dwordx2 v[{240+2*rq}:{241+2*rq}], v18, s[20:23], 0 offen offset:{16*rq}')
    a('v_lshrrev_b32 v11, 2, v2')
    a('v_and_b32 v12, 3, v2')
    a(f's_mul_i32 s6, s4, {64*3584}')
    a(f's_mul_i32 s29, s28, 896')
    a('s_add_u32 s6, s6, s29')
    a(f's_add_u32 s6, s6, {WS_H}')
    a('v_mul_u32_u24 v3, 3584, v11')
    a('v_lshl_add_u32 v3, v12, 4, v3')
    a('v_bfe_u32 v4, v11, 2, 2')
    a('v_xor_b32 v4, v4, v12')
    a('v_lshlrev_b32 v4, 4, v4')
    a('v_lshl_add_u32 v4, v11, 6, v4')
    a(f's_mul_i32 s40, s28, {2*WST}')
    a('v_add_u32 v4, s40, v4')
    a('v_lshrrev_b32 v11, 3, v2')
    a('v_and_b32 v12, 7, v2')
    a('v_lshlrev_b32 v5, 10, v11')
    a('v_lshl_add_u32 v5, v12, 4, v5')
    a(f's_mul_i32 s41, s28, {448*1024}')
    a('s_add_u32 s41, s41, s7')
    a('v_lshrrev_b32 v6, 1, v11')
    a('v_xor_b32 v6, v6, v11')
    a('v_and_b32 v6, 1, v6')
    a('v_lshrrev_b32 v13, 2, v12')
    a('v_xor_b32 v6, v6, v13')
    a('v_lshlrev_b32 v6, 6, v6')
    a('v_and_b32 v13, 3, v12')
    a('v_lshl_add_u32 v6, v13, 4, v6')
    a('v_lshl_add_u32 v6, v11, 7, v6')
    a('v_add_u32 v6, 4096, v6')
    a('v_add_u32 v6, s40, v6')
    for q in range(1, 4):
        a(f'v_add_u32 v{20+q}, {16*3584*q}, v3')
        a(f'v_add_u32 v{24+q}, {8*1024*q}, v5')
    NS = 3
    SB = 128
    def gload(i):
        st = SB + 32 * (i % NS)
        a(f's_add_u32 s30, s6, {64*i}')
        a(f's_add_u32 s31, s41, {32*1024*i}')
        L = []
        for q in range(4):
            va = 'v3' if q == 0 else f'v{20+q}'
            L.append(f'buffer_load_dwordx4 v[{st+4*q}:{st+3+4*q}], {va}, s[8:11], s30 offen')
        for q in range(4):
            vb = 'v5' if q == 0 else f'v{24+q}'
            L.append(f'buffer_load_dwordx4 v[{st+16+4*q}:{st+19+4*q}], {vb}, s[12:15], s31 offen')
        return L
    for i in range(NS):
        for x in gload(i): a(x)
    a('v_bfe_u32 v12, v9, 2, 2')
    a('v_xor_b32 v12, v12, v10')
    a('v_lshlrev_b32 v12, 4, v12')
    a('v_lshl_add_u32 v11, v9, 6, v12')
    a('v_add_u32 v11, s40, v11')
    a('v_xor_b32 v14, 32, v11')
    a('v_bfe_u32 v12, v2, 2, 2')
    a('v_lshrrev_b32 v13, 1, v12')
    a('v_xor_b32 v13, v13, v12')
    a('v_and_b32 v13, 1, v13')
    a('v_lshl_add_u32 v12, v10, 3, v12')
    a('v_lshlrev_b32 v12, 7, v12')
    a('v_lshl_add_u32 v12, v13, 6, v12')
    a('v_bfe_u32 v13, v2, 4, 1')
    a('v_lshl_add_u32 v12, v13, 5, v12')
    a('v_and_b32 v13, 3, v2')
    a('v_lshl_add_u32 v12, v13, 3, v12')
    a('v_add_u32 v12, 4096, v12')
    a('v_add_u32 v12, s40, v12')
    a('v_xor_b32 v15, 64, v12')
    for r in range(64): a(f'v_mov_b32 v{64+r}, 0')
    def lwrite(i):
        st = SB + 32 * (i % NS); sb = (i & 1) * WST
        L = []
        for q in range(4): L.append(f'ds_write_b128 v4, v[{st+4*q}:{st+3+4*q}] offset:{sb + 1024*q}')
        for q in range(4): L.append(f'ds_write_b128 v6, v[{st+16+4*q}:{st+19+4*q}] offset:{sb + 1024*q}')
        return L
    def frd(i, kk, fs):
        fa = 28 + 16 * fs; sb = (i & 1) * WST
        va = 'v11' if kk == 0 else 'v14'
        L = []
        for mt in range(2):
            L.append(f'ds_read_b128 v[{fa+4*mt}:{fa+3+4*mt}], {va} offset:{sb + mt*2048}')
        for nt in range(2):
            vb = 'v12' if nt == 0 else 'v15'
            for u in range(2):
                L.append(f'ds_read_b64_tr_b16 v[{fa+8+4*nt+2*u}:{fa+9+4*nt+2*u}], {vb} offset:{sb + (kk*16+4*u)*128}')
        return L
    def mm(fs, j):
        fa = 28 + 16 * fs
        mt, nt = j >> 1, j & 1
        acc = 64 + 16 * (2 * mt + nt)
        return f'v_mfma_f32_32x32x16_bf16 v[{acc}:{acc+15}], v[{fa+8+4*nt}:{fa+11+4*nt}], v[{fa+4*mt}:{fa+3+4*mt}], v[{acc}:{acc+15}]'
    NT = 14
    a(f's_waitcnt vmcnt({8 + 8*NS})')
    a(f'ds_write_b128 v19, v[224:227] offset:{ATB}') if False else None
    a(f'v_add_u32 v19, {ATB}, v19')
    a('ds_write_b128 v19, v[224:227]')
    a(f'ds_write_b128 v19, v[228:231] offset:{32*192}')
    a(f's_waitcnt vmcnt({8*(NS-1)})')
    stamp(a, 1)
    for x in lwrite(0): a(x)
    for x in frd(0, 0, 0): a(x)
    for i in range(NT):
        if i % 2 == 0: stamp(a, 2 + i // 2)
        W = lwrite(i + 1) if i + 1 < NT else []
        G = gload(i + 1 + NS - 1 + 0) if False else (gload(i + NS) if i + NS < NT else [])
        F1 = frd(i, 1, 1)
        F0 = frd(i + 1, 0, 0) if i + 1 < NT else []
        a('s_waitcnt lgkmcnt(0)')
        a(mm(0, 0))
        for x in F1[:3]: a(x)
        a(mm(0, 1))
        for x in F1[3:]: a(x)
        for x in G[:4]: a(x)
        a(mm(0, 2))
        for x in G[4:]: a(x)
        if W:
            newer = 8 * (min(NT - 1, i + NS) - (i + 1))
            a(f's_waitcnt vmcnt({newer})')
            for x in W[:2]: a(x)
        a(mm(0, 3))
        for x in W[2:4]: a(x)
        a(f's_waitcnt lgkmcnt({min(len(W), 4)})')
        a(mm(1, 0))
        for x in W[4:6]: a(x)
        a(mm(1, 1))
        for x in W[6:8]: a(x)
        a(mm(1, 2))
        for x in F0: a(x)
        a(mm(1, 3))
    stamp(a, 9)
    a('s_nop 7')
    a('s_nop 7')
    a('s_barrier')
    a('v_lshlrev_b32 v16, 4, v2')
    a('v_lshl_add_u32 v17, v1, 14, v16')
    for r4 in range(16):
        a(f'ds_write_b128 v17, v[{64+4*r4}:{67+4*r4}] offset:{1024*r4}')
    a('v_bfe_u32 v20, v2, 2, 2')
    a('v_lshl_add_u32 v20, v10, 2, v20')
    a('v_lshl_add_u32 v20, v8, 5, v20')
    a('v_mul_u32_u24 v20, 192, v20')
    a('v_bfe_u32 v21, v2, 4, 1')
    a('v_lshl_add_u32 v20, v21, 5, v20')
    a('v_and_b32 v21, 3, v2')
    a('v_lshl_add_u32 v20, v21, 3, v20')
    a('v_lshl_add_u32 v20, v7, 6, v20')
    a(f'v_add_u32 v20, {ATB}, v20')
    a('s_waitcnt lgkmcnt(0)')
    a('s_barrier')
    a('v_lshl_add_u32 v17, v1, 12, v16')
    for src in range(4):
        for r4 in range(4):
            a(f'ds_read_b128 v[{128+16*src+4*r4}:{131+16*src+4*r4}], v17 offset:{16384*src + 1024*r4}')
    for rq in range(4):
        a(f'ds_read_b64_tr_b16 v[{48+2*rq}:{49+2*rq}], v20 offset:{8*192*rq}')
    a('s_waitcnt lgkmcnt(4)')
    for r in range(16):
        a(f'v_add_f32 v{128+r}, v{128+r}, v{144+r}')
        a(f'v_add_f32 v{160+r}, v{160+r}, v{176+r}')
        a(f'v_add_f32 v{64+r}, v{128+r}, v{160+r}')
    stamp(a, 10)
    a('s_waitcnt lgkmcnt(0)')
    for rq in range(4):
        for p in range(2):
            y0, y1 = 64 + 4 * rq + 2 * p, 65 + 4 * rq + 2 * p
            b, x, at = 232 + 2 * rq + p, 240 + 2 * rq + p, 48 + 2 * rq + p
            a(f'v_cvt_pk_bf16_f32 v20, v{y0}, v{y1}')
            a('v_lshlrev_b32 v21, 16, v20')
            a('v_and_b32 v22, 0xffff0000, v20')
            a(f'v_lshlrev_b32 v23, 16, v{b}')
            a(f'v_and_b32 v24, 0xffff0000, v{b}')
            a('v_add_f32 v21, v21, v23')
            a('v_add_f32 v22, v22, v24')
            a('v_cvt_pk_bf16_f32 v20, v21, v22')
            a('v_lshlrev_b32 v21, 16, v20')
            a('v_and_b32 v22, 0xffff0000, v20')
            a(f'v_lshlrev_b32 v23, 16, v{x}')
            a(f'v_and_b32 v24, 0xffff0000, v{x}')
            a(f'v_lshlrev_b32 v25, 16, v{at}')
            a(f'v_and_b32 v26, 0xffff0000, v{at}')
            a('v_add_f32 v23, v23, v25')
            a('v_add_f32 v24, v24, v26')
            a('v_cvt_pk_bf16_f32 v20, v23, v24')
            a('v_lshlrev_b32 v23, 16, v20')
            a('v_and_b32 v24, 0xffff0000, v20')
            a('v_add_f32 v23, v23, v21')
            a('v_add_f32 v24, v24, v22')
            a(f'v_cvt_pk_bf16_f32 v{28+2*(rq&1)+p}, v23, v24')
        o = 28 + 2 * (rq & 1)
        a(f'buffer_store_dwordx2 v[{o}:{o+1}], v18, s[24:27], 0 offen offset:{16*rq}')
    if os.environ.get('STAMP'):
        a('s_waitcnt vmcnt(0)')
    stamp(a, 11)
    a.lab('F_end')
    a('s_endpgm')
    return a.text()
```

```python
from gen import A, srd, f32hex, bf16r, WS_XN, WS_XNT, WS_KR, WS_AT, WS_H, WS_SIZE, LOG2E
from gen3 import stamp
import os
KRS = 4352
GC1 = -2 * 0.7978845608028654 * LOG2E
GC2 = GC1 * 0.044715
NG = 224
CST = 4416
UB = 8 * CST
CONV_LDS = UB + 96 * 80
ASZ, BSZ = 128 * 144, 64 * 320
STG = ASZ + BSZ
GEMM_LDS = 2 * STG

def trace_end(a):
    if not os.environ.get('TRACE'): return
    a('s_waitcnt vmcnt(0)')
    a('s_memrealtime s[98:99]')
    a('s_waitcnt lgkmcnt(0)')
    a('v_mov_b32 v40, s96')
    a('v_mov_b32 v41, s98')
    a('s_lshl_b32 s20, s2, 3')
    a(f's_add_u32 s20, s20, {23<<20}')
    a('v_mov_b32 v42, s20')
    a('v_cmp_eq_u32 vcc, 0, v0')
    a('s_and_saveexec_b64 s[16:17], vcc')
    a('buffer_store_dwordx2 v[40:41], v42, s[8:11], 0 offen')
    a('s_mov_b64 exec, s[16:17]')

def conv_body(a, chan_sreg, nch=2):
    srd(a, 12, 48, 512 * 2)
    a(f's_mul_i32 s3, {chan_sreg}, {nch}')
    a(f's_mul_i32 s4, s3, {KRS}')
    a(f's_add_u32 s4, s4, {WS_KR}')
    a(f's_lshl_b32 s5, s3, 12')
    a(f's_add_u32 s6, s5, {WS_XNT}')
    a(f's_add_u32 s7, s5, {WS_AT}')
    a('v_lshlrev_b32 v1, 4, v0')
    a('v_add_u32 v2, 4096, v1')
    a(f's_lshl_b32 s5, s3, 1')
    a('v_mov_b32 v3, s5')
    for c in range(nch):
        R = 100 + 24 * c
        a(f's_add_u32 s20, s4, {KRS*c}')
        a(f's_add_u32 s21, s6, {4096*c}')
        a(f'buffer_load_dwordx4 v[{R}:{R+3}], v1, s[8:11], s20 offen')
        a(f'buffer_load_dwordx4 v[{R+4}:{R+7}], v1, s[8:11], s20 offen offset:16')
        a(f'buffer_load_dwordx4 v[{R+16}:{R+19}], v1, s[8:11], s21 offen')
        a(f'buffer_load_dwordx4 v[{R+8}:{R+11}], v2, s[8:11], s20 offen')
        a(f'buffer_load_dwordx4 v[{R+12}:{R+15}], v2, s[8:11], s20 offen offset:16')
        a(f'buffer_load_ushort v{R+20}, v3, s[12:15], 0 offen offset:{2*c}')
    for r in range(36, 40): a(f'v_mov_b32 v{r}, 0')
    a('v_cmp_gt_u32 vcc, 160, v0')
    a('s_and_saveexec_b64 s[16:17], vcc')
    a(f'ds_write_b128 v1, v[36:39] offset:{UB}')
    a('s_mov_b64 exec, s[16:17]')
    a('v_lshrrev_b32 v4, 2, v0')
    a('v_mul_u32_u24 v4, 80, v4')
    a('v_and_b32 v5, 3, v0')
    a('v_lshl_add_u32 v4, v5, 4, v4')
    a('v_and_b32 v6, 31, v0')
    a('v_bfe_u32 v7, v0, 5, 1')
    a('v_sub_u32 v8, 7, v6')
    a('v_and_b32 v8, 7, v8')
    a(f'v_mul_u32_u24 v8, {CST}, v8')
    a('v_sub_u32 v9, 2047, v6')
    a('v_lshrrev_b32 v9, 3, v9')
    a('v_add_u32 v9, v9, v7')
    a('v_lshl_add_u32 v8, v9, 4, v8')
    a(f'v_subrev_u32 v8, {64*63}, v8')
    a('v_mul_u32_u24 v9, 80, v6')
    a('v_lshl_add_u32 v9, v7, 4, v9')
    a(f'v_add_u32 v9, {UB - 31*80}, v9')
    a('v_lshrrev_b32 v10, 6, v0')
    a('v_and_b32 v11, 63, v0')
    a('v_lshlrev_b32 v11, 4, v11')
    a('v_readfirstlane_b32 s18, v10')
    a('v_lshl_add_u32 v96, v10, 13, v11')
    a('v_lshrrev_b32 v12, 1, v10')
    a('v_and_b32 v13, 1, v10')
    a('v_lshl_add_u32 v97, v12, 12, v11')
    a('v_lshl_add_u32 v97, v13, 11, v97')
    a('v_add_u32 v98, 24576, v97')
    a('v_cmp_eq_u32 vcc, 0, v12')
    a(f'v_add_u32 v99, {UB}, v11')
    a('s_nop 0')
    a('v_cndmask_b32 v98, v98, v99, vcc')
    a('v_lshl_add_u32 v14, v12, 5, v6')
    a('v_mul_u32_u24 v15, 80, v14')
    a('v_lshl_add_u32 v15, v7, 3, v15')
    a('v_lshl_add_u32 v15, v13, 5, v15')
    a('v_lshlrev_b32 v14, 6, v14')
    a('v_lshl_add_u32 v14, v7, 3, v14')
    a('v_lshl_add_u32 v14, v13, 5, v14')
    def shifted(D, vaddr):
        d = lambda m: f'v{D+m}'
        a(f'ds_write_b128 {vaddr}, v[{D}:{D+3}]')
        a(f'ds_write_b128 {vaddr}, v[{D+2}:{D+5}] offset:{4*CST}')
        for m in range(4):
            a(f'v_alignbit_b32 v{40+m}, {d(m+1)}, {d(m)}, 16')
            a(f'v_alignbit_b32 v{44+m}, {d(m+2)}, {d(m+1)}, 16')
            a(f'v_alignbit_b32 v{48+m}, {d(m+3)}, {d(m+2)}, 16')
            a(f'v_alignbit_b32 v{52+m}, {d(m+4)}, {d(m+3)}, 16')
            a(f'v_mov_b32 v{56+m}, {d(m+1)}')
            a(f'v_mov_b32 v{60+m}, {d(m+3)}')
        for c, r in ((1, 40), (3, 44), (5, 48), (7, 52), (2, 56), (6, 60)):
            a(f'ds_write_b128 {vaddr}, v[{r}:{r+3}] offset:{c*CST}')
    work = {0: [(k, 1) for k in range(0, 12)],
            1: [(k, 1) for k in range(12, 24)],
            2: [(k, 1) for k in range(24, 32)] + [(k, 0) for k in range(32, 40)],
            3: [(k, 0) for k in range(40, 64)]}
    PF = 3
    for c in range(nch):
        R = 100 + 24 * c
        for r in range(32): a(f'v_mov_b32 v{64+r}, 0')
        stamp(a, 6*c, 150, NG)
        a(f's_waitcnt vmcnt({6*(nch-1-c)})')
        stamp(a, 6*c+1, 150, NG)
        if c > 0:
            a('s_barrier')
        shifted(R, 'v1')
        a(f'ds_write_b128 v4, v[{R+16}:{R+19}] offset:{UB + 2560}')
        a('v_cmp_gt_u32 vcc, 8, v0')
        a('s_and_saveexec_b64 s[16:17], vcc')
        shifted(R + 8, 'v2')
        a('s_mov_b64 exec, s[16:17]')
        a(f'v_lshlrev_b32 v{R+20}, 16, v{R+20}')
        a('s_waitcnt lgkmcnt(0)')
        a('s_barrier')
        stamp(a, 6*c+2, 150, NG)
        for w in range(4):
            a.lab(f'C{c}_w{w}')
            if w < 3:
                a(f's_cmp_lg_u32 s18, {w}')
                a(f's_cbranch_scc1 C{c}_w{w+1}')
            seq = [(k, h, both) for (k, both) in work[w] for h in (0, 1)]
            def nread(idx): return 3 if seq[idx][2] else 2
            def rd(idx):
                k, h, both = seq[idx]
                st = 16 + 12 * (idx % 4)
                a(f'ds_read_b128 v[{st}:{st+3}], v8 offset:{64*(63-k)+32*h}')
                a(f'ds_read_b128 v[{st+4}:{st+7}], v9 offset:{80*(63-k)+32*h+2560}')
                if both: a(f'ds_read_b128 v[{st+8}:{st+11}], v9 offset:{80*(63-k)+32*h}')
            for i in range(min(PF, len(seq))): rd(i)
            for idx in range(len(seq)):
                k, h, both = seq[idx]
                st = 16 + 12 * (idx % 4)
                later = sum(nread(j) for j in range(idx + 1, min(idx + PF, len(seq))))
                a(f's_waitcnt lgkmcnt({later})')
                a(f'v_mfma_f32_32x32x16_bf16 v[80:95], v[{st}:{st+3}], v[{st+4}:{st+7}], v[80:95]')
                if both: a(f'v_mfma_f32_32x32x16_bf16 v[64:79], v[{st}:{st+3}], v[{st+8}:{st+11}], v[64:79]')
                if idx + PF < len(seq): rd(idx + PF)
            if w < 3: a(f's_branch C{c}_red')
        a.lab(f'C{c}_red')
        a('s_nop 15')
        stamp(a, 6*c+3, 150, NG)
        a('s_barrier')
        stamp(a, 6*c+4, 150, NG)
        a('s_cmp_eq_u32 s18, 3')
        a(f's_cbranch_scc1 C{c}_skip0')
        for r4 in range(4):
            a(f'ds_write_b128 v96, v[{64+4*r4}:{67+4*r4}] offset:{1024*r4}')
        a.lab(f'C{c}_skip0')
        for r4 in range(4):
            a(f'ds_write_b128 v96, v[{80+4*r4}:{83+4*r4}] offset:{4096+1024*r4}')
        a('s_waitcnt lgkmcnt(0)')
        a('s_barrier')
        for src in range(3):
            for q in range(2):
                a(f'ds_read_b128 v[{16+8*src+4*q}:{19+8*src+4*q}], v97 offset:{8192*src+1024*q}')
        for q in range(2):
            a(f'ds_read_b128 v[{40+4*q}:{43+4*q}], v98 offset:{1024*q}')
        for q in range(2):
            a(f'ds_read_b64 v[{48+2*q}:{49+2*q}], v15 offset:{UB + 2560 + 16*q}')
        a(f's_add_u32 s20, s7, {4096*c}')
        a('s_waitcnt lgkmcnt(0)')
        stamp(a, 6*c+5, 150, NG)
        for r in range(8):
            a(f'v_add_f32 v{16+r}, v{16+r}, v{24+r}')
            a(f'v_add_f32 v{32+r}, v{32+r}, v{40+r}')
            a(f'v_add_f32 v{16+r}, v{16+r}, v{32+r}')
        for q in range(2):
            for p in range(2):
                u = 48 + 2 * q + p
                y0, y1 = 16 + 4 * q + 2 * p, 17 + 4 * q + 2 * p
                a(f'v_lshlrev_b32 v40, 16, v{u}')
                a(f'v_and_b32 v41, 0xffff0000, v{u}')
                a(f'v_mul_f32 v40, v40, v{R+20}')
                a(f'v_mul_f32 v41, v41, v{R+20}')
                a('v_cvt_pk_bf16_f32 v42, v40, v41')
                a('v_lshlrev_b32 v40, 16, v42')
                a('v_and_b32 v41, 0xffff0000, v42')
                a(f'v_cvt_pk_bf16_f32 v42, v{y0}, v{y1}')
                a('v_lshlrev_b32 v43, 16, v42')
                a('v_and_b32 v44, 0xffff0000, v42')
                a('v_add_f32 v40, v40, v43')
                a('v_add_f32 v41, v41, v44')
                a(f'v_cvt_pk_bf16_f32 v{52+2*q+p}, v40, v41')
            a(f'buffer_store_dwordx2 v[{52+2*q}:{53+2*q}], v14, s[8:11], s20 offen offset:{16*q}')
    trace_end(a)
    a('s_endpgm')

def gemm1_body(a, wg_sreg):
    srd(a, 12, 52, 512 * 1792 * 2)
    srd(a, 16, 54, 1792 * 2)
    a(f's_and_b32 s4, {wg_sreg}, 7')
    a('s_lshl_b32 s4, s4, 1')
    a(f's_bfe_u32 s5, {wg_sreg}, 0x10003')
    a('s_add_u32 s4, s4, s5')
    a(f's_lshr_b32 s5, {wg_sreg}, 4')
    a('v_lshrrev_b32 v1, 3, v0')
    a('v_and_b32 v2, 7, v0')
    a('s_lshl_b32 s6, s4, 17')
    a('v_lshlrev_b32 v3, 10, v1')
    a('v_lshl_add_u32 v3, v2, 4, v3')
    a('v_add_u32 v3, s6, v3')
    a('v_mul_u32_u24 v4, 144, v1')
    a('v_lshl_add_u32 v4, v2, 4, v4')
    a('v_lshrrev_b32 v1, 4, v0')
    a('v_and_b32 v2, 15, v0')
    a('v_mul_u32_u24 v5, 3584, v1')
    a('v_lshl_add_u32 v5, v2, 4, v5')
    a('s_lshl_b32 s7, s5, 8')
    a('v_add_u32 v5, s7, v5')
    a('v_mul_u32_u24 v6, 320, v1')
    a('v_lshl_add_u32 v6, v2, 4, v6')
    a(f'v_add_u32 v6, {ASZ}, v6')
    for q in range(1, 4):
        a(f'v_add_u32 v{8+q}, {32768*q}, v3')
        a(f'v_add_u32 v{11+q}, {16*3584*q}, v5')
    SETS = (96, 128, 160)
    def gload(kt):
        st = SETS[kt % 3]
        a(f's_mov_b32 s20, {kt*128}')
        a(f's_mov_b32 s21, {kt*64*3584}')
        for q in range(4):
            va = 'v3' if q == 0 else f'v{8+q}'
            a(f'buffer_load_dwordx4 v[{st+4*q}:{st+3+4*q}], {va}, s[8:11], s20 offen')
        for q in range(4):
            vb = 'v5' if q == 0 else f'v{11+q}'
            a(f'buffer_load_dwordx4 v[{st+16+4*q}:{st+19+4*q}], {vb}, s[12:15], s21 offen')
    stamp(a, 0, 54)
    gload(0); gload(1); gload(2)
    a('v_lshrrev_b32 v1, 6, v0')
    a('v_lshrrev_b32 v7, 1, v1')
    a('v_and_b32 v8, 1, v1')
    a('v_and_b32 v15, 31, v0')
    a('v_bfe_u32 v48, v0, 5, 1')
    a('v_lshl_add_u32 v49, v7, 6, v15')
    a('v_mul_u32_u24 v49, 144, v49')
    a('v_lshl_add_u32 v49, v48, 4, v49')
    a('v_bfe_u32 v50, v0, 2, 2')
    a('v_lshl_add_u32 v50, v48, 3, v50')
    a('v_mul_u32_u24 v50, 320, v50')
    a('v_bfe_u32 v51, v0, 4, 1')
    a('v_lshlrev_b32 v51, 5, v51')
    a('v_lshl_add_u32 v51, v8, 7, v51')
    a('v_and_b32 v52, 3, v0')
    a('v_lshl_add_u32 v51, v52, 3, v51')
    a('v_add_u32 v50, v50, v51')
    a(f'v_add_u32 v50, {ASZ}, v50')
    a('v_lshlrev_b32 v53, 7, v8')
    a('v_lshl_add_u32 v53, v48, 3, v53')
    a('v_add_u32 v53, s7, v53')
    for nt in range(2):
        for rq in range(4):
            a(f'buffer_load_dwordx2 v[{56+8*nt+2*rq}:{57+8*nt+2*rq}], v53, s[16:19], 0 offen offset:{64*nt+16*rq}')
    for r in range(64): a(f'v_mov_b32 v{192+r}, 0')
    def lwrite(kt):
        st = SETS[kt % 3]; buf = kt & 1
        for q in range(4):
            a(f'ds_write_b128 v4, v[{st+4*q}:{st+3+4*q}] offset:{buf*STG + 32*144*q}')
        for q in range(4):
            a(f'ds_write_b128 v6, v[{st+16+4*q}:{st+19+4*q}] offset:{buf*STG + 16*320*q}')
    def frd(buf, kk, fs):
        fa = 16 + 16 * fs
        for mt in range(2):
            a(f'ds_read_b128 v[{fa+4*mt}:{fa+3+4*mt}], v49 offset:{buf*STG + mt*32*144 + kk*32}')
        for nt in range(2):
            for u in range(2):
                a(f'ds_read_b64_tr_b16 v[{fa+8+4*nt+2*u}:{fa+9+4*nt+2*u}], v50 offset:{buf*STG + (kk*16+4*u)*320 + nt*64}')
    def fmma(fs):
        fa = 16 + 16 * fs
        for mt in range(2):
            for nt in range(2):
                acc = 192 + 16 * (2 * mt + nt)
                a(f'v_mfma_f32_32x32x16_bf16 v[{acc}:{acc+15}], v[{fa+8+4*nt}:{fa+11+4*nt}], v[{fa+4*mt}:{fa+3+4*mt}], v[{acc}:{acc+15}]')
    a('s_waitcnt vmcnt(24)')
    stamp(a, 1, 54)
    lwrite(0)
    a('s_waitcnt lgkmcnt(0)')
    a('s_barrier')
    for kt in range(8):
        buf = kt & 1
        stamp(a, 2 + kt, 54)
        frd(buf, 0, 0)
        if kt < 7:
            newer = (8 if kt + 2 < 8 else 0) + (8 if kt == 0 else 0)
            a(f's_waitcnt vmcnt({newer})')
            lwrite(kt + 1)
            if kt + 3 < 8: gload(kt + 3)
        nl = 8 if kt < 7 else 0
        for kk in range(4):
            if kk < 3:
                frd(buf, kk + 1, (kk + 1) & 1)
                a('s_waitcnt lgkmcnt(6)')
            else:
                a('s_waitcnt lgkmcnt(0)')
            fmma(kk & 1)
        if kt < 7:
            a('s_barrier')
    stamp(a, 10, 54)
    a(f'v_mov_b32 v16, {f32hex(GC1)}')
    a(f'v_mov_b32 v17, {f32hex(GC1)}')
    a(f's_mov_b32 s22, {f32hex(GC2)}')
    a(f's_mov_b32 s23, {f32hex(GC2)}')
    a('v_mov_b32 v18, 1.0')
    a('v_mov_b32 v19, 1.0')
    a('v_lshl_add_u32 v20, v7, 6, v15')
    a('s_lshl_b32 s6, s4, 7')
    a('v_add_u32 v20, s6, v20')
    a('v_mul_u32_u24 v20, 3584, v20')
    a('v_add_u32 v20, v20, v53')
    a(f'v_add_u32 v20, {WS_H}, v20')
    a(f'v_add_u32 v21, {32*3584}, v20')
    a('s_waitcnt vmcnt(0)')
    for i in range(16):
        a(f'v_lshlrev_b32 v{96+2*i}, 16, v{56+i}')
        a(f'v_and_b32 v{97+2*i}, 0xffff0000, v{56+i}')
    a('s_nop 7')
    for mt in range(2):
        for nt in range(2):
            acc = 192 + 16 * (2 * mt + nt)
            for rq in range(4):
                regs = []
                for p in range(2):
                    b = 96 + 16 * nt + 4 * rq + 2 * p
                    y0 = acc + 4 * rq + 2 * p
                    P = 24 + 4 * p; Q = 26 + 4 * p; T = 32 + p
                    regs.append((b, y0, P, Q, T))
                for (b, y0, P, Q, T) in regs:
                    a(f'v_cvt_pk_bf16_f32 v{T}, v{y0}, v{y0+1}')
                for (b, y0, P, Q, T) in regs:
                    a(f'v_lshlrev_b32 v{P}, 16, v{T}')
                    a(f'v_and_b32 v{P+1}, 0xffff0000, v{T}')
                for (b, y0, P, Q, T) in regs:
                    a(f'v_pk_add_f32 v[{P}:{P+1}], v[{P}:{P+1}], v[{b}:{b+1}]')
                for (b, y0, P, Q, T) in regs:
                    a(f'v_cvt_pk_bf16_f32 v{T}, v{P}, v{P+1}')
                for (b, y0, P, Q, T) in regs:
                    a(f'v_lshlrev_b32 v{P}, 16, v{T}')
                    a(f'v_and_b32 v{P+1}, 0xffff0000, v{T}')
                for (b, y0, P, Q, T) in regs:
                    a(f'v_pk_mul_f32 v[{Q}:{Q+1}], v[{P}:{P+1}], v[{P}:{P+1}]')
                for (b, y0, P, Q, T) in regs:
                    a(f'v_pk_fma_f32 v[{Q}:{Q+1}], v[{Q}:{Q+1}], s[22:23], v[16:17]')
                for (b, y0, P, Q, T) in regs:
                    a(f'v_pk_mul_f32 v[{Q}:{Q+1}], v[{Q}:{Q+1}], v[{P}:{P+1}]')
                for (b, y0, P, Q, T) in regs:
                    a(f'v_exp_f32 v{Q}, v{Q}')
                    a(f'v_exp_f32 v{Q+1}, v{Q+1}')
                for (b, y0, P, Q, T) in regs:
                    a(f'v_pk_add_f32 v[{Q}:{Q+1}], v[{Q}:{Q+1}], v[18:19]')
                for (b, y0, P, Q, T) in regs:
                    a(f'v_rcp_f32 v{Q}, v{Q}')
                    a(f'v_rcp_f32 v{Q+1}, v{Q+1}')
                for (b, y0, P, Q, T) in regs:
                    a(f'v_pk_mul_f32 v[{P}:{P+1}], v[{P}:{P+1}], v[{Q}:{Q+1}]')
                for p, (b, y0, P, Q, T) in enumerate(regs):
                    a(f'v_cvt_pk_bf16_f32 v{34 + 2*(rq&1) + p}, v{P}, v{P+1}')
                dst = 'v20' if mt == 0 else 'v21'
                o = 34 + 2 * (rq & 1)
                a(f'buffer_store_dwordx2 v[{o}:{o+1}], {dst}, s[8:11], 0 offen offset:{64*nt+16*rq}')

def gen_mid2():
    a = A()
    a(f's_cmp_ge_u32 s2, {NG + 256}')
    a('s_cbranch_scc1 M_end')
    a('s_load_dwordx16 s[36:51], s[0:1], 0')
    a('s_load_dwordx8 s[52:59], s[0:1], 64')
    a('s_load_dwordx2 s[60:61], s[0:1], 112')
    a('s_load_dwordx2 s[62:63], s[0:1], 104')
    a('s_waitcnt lgkmcnt(0)')
    srd(a, 8, 60, WS_SIZE)
    srd(a, 84, 62, 256)
    if os.environ.get('TRACE'):
        a('s_memrealtime s[96:97]')
        a('s_waitcnt lgkmcnt(0)')
    a(f's_cmp_ge_u32 s2, {NG}')
    a('s_cbranch_scc0 ' + ('M_end' if os.environ.get('SKIP') == 'gemm' else 'M_gemm'))
    if os.environ.get('SKIP') == 'conv': a('s_branch M_end')
    a(f's_sub_u32 s19, s2, {NG}')
    conv_body(a, 's19')
    a.lab('M_gemm')
    import gen6
    gen6.gemm1_body(a, 's2')
    a('s_waitcnt vmcnt(0)')
    stamp(a, 11, 54, gen6.GW)
    trace_end(a)
    a.lab('M_end')
    a('s_endpgm')
    return a.text(), max(CONV_LDS, gen6.GEMM_LDS)

if __name__ == '__main__':
    import sys
    from gen import build
    from gen4 import gen_prep2
    import gen7
    t, l = gen_prep2()
    m, ml = gen_mid2()
    ks = [('prep_kernel', 576, l, t, 128), ('mid_kernel', NG + 256, ml, m, 256),
          ('fin_kernel', 256, gen7.FIN_LDS, gen7.gen_fin3(), 256)]
    open(sys.argv[1] if len(sys.argv) > 1 else 'k.s', 'w').write(build(ks))
```

```python
from gen import A, srd, f32hex, bf16r, exp_acc, L2E_HI, L2E_LO, LN2, LOG2E
from gen3 import stamp
from gen import WS_XN, WS_XNT, WS_AT, WS_KR, WS_H, WS_SIZE, WS_W1F, WS_W2F
N_PACK = 112
KRS = 4352
GC1 = -2 * 0.7978845608028654 * LOG2E
GC2 = GC1 * 0.044715

def gen_prep2():
    a = A()
    N_LN = 64
    a(f's_cmp_ge_u32 s2, {N_LN + 512 + N_PACK}')
    a('s_cbranch_scc1 P_end')
    a('s_load_dwordx16 s[36:51], s[0:1], 0')
    a('s_load_dwordx2 s[52:53], s[0:1], 112')
    a('s_waitcnt lgkmcnt(0)')
    return prep_body(a)

def prep_body(a):
    N_LN = 64
    RSB = 528; MSZ = 16 * RSB; SLOT = 4 * MSZ
    srd(a, 8, 52, WS_SIZE)
    a(f's_cmp_ge_u32 s2, {N_LN}')
    a('s_cbranch_scc1 P_kgen')
    srd(a, 4, 36, 2048 * 512 * 2)
    a('v_lshrrev_b32 v1, 3, v0')
    a('v_and_b32 v2, 7, v0')
    a('s_lshl_b32 s12, s2, 15')
    a('v_lshlrev_b32 v3, 10, v1')
    a('v_lshl_add_u32 v3, v2, 4, v3')
    a('v_add_u32 v3, s12, v3')
    for q in range(8):
        a(f'buffer_load_dwordx4 v[{16+4*q}:{19+4*q}], v3, s[4:7], 0 offen offset:{128*q}')
    a('s_waitcnt vmcnt(0)')
    for i in range(32):
        a(f'v_lshlrev_b32 v{64+2*i}, 16, v{16+i}')
        a(f'v_and_b32 v{65+2*i}, 0xffff0000, v{16+i}')
    a('v_add_f32 v4, v64, v65')
    a('v_add_f32 v5, v66, v67')
    for i in range(4, 64, 4):
        a(f'v_add_f32 v6, v{64+i}, v{65+i}')
        a(f'v_add_f32 v7, v{66+i}, v{67+i}')
        a('v_add_f32 v4, v4, v6')
        a('v_add_f32 v5, v5, v7')
    a('v_add_f32 v4, v4, v5')
    def red8(reg):
        for off in (0x041F, 0x081F, 0x101F):
            a(f'ds_swizzle_b32 v5, {reg} offset:{off}')
            a('s_waitcnt lgkmcnt(0)')
            a(f'v_add_f32 {reg}, {reg}, v5')
    red8('v4')
    a(f'v_mul_f32 v4, {f32hex(1/512)}, v4')
    a('v_sub_f32 v5, v64, v4')
    a('v_sub_f32 v7, v65, v4')
    a('v_mul_f32 v6, v5, v5')
    a('v_mul_f32 v8, v7, v7')
    for i in range(2, 64, 2):
        a(f'v_sub_f32 v5, v{64+i}, v4')
        a(f'v_sub_f32 v7, v{65+i}, v4')
        a('v_fmac_f32 v6, v5, v5')
        a('v_fmac_f32 v8, v7, v7')
    a('v_add_f32 v6, v6, v8')
    red8('v6')
    a(f'v_mul_f32 v6, {f32hex(1/512)}, v6')
    bf16r(a, 'v4', 'v4')
    bf16r(a, 'v6', 'v6')
    a(f'v_add_f32 v6, {f32hex(1e-5)}, v6')
    bf16r(a, 'v6', 'v6')
    a('v_sqrt_f32 v6, v6')
    a('s_nop 1')
    bf16r(a, 'v6', 'v6')
    a('v_rcp_f32 v7, v6')
    a('s_nop 1')
    for i in range(32):
        x0, x1 = f'v{64+2*i}', f'v{65+2*i}'
        a(f'v_sub_f32 {x0}, {x0}, v4')
        a(f'v_sub_f32 {x1}, {x1}, v4')
        a(f'v_cvt_pk_bf16_f32 v8, {x0}, {x1}')
        a(f'v_lshlrev_b32 {x0}, 16, v8')
        a(f'v_and_b32 {x1}, 0xffff0000, v8')
        a(f'v_mul_f32 v8, {x0}, v7')
        a(f'v_mul_f32 v9, {x1}, v7')
        a(f'v_fma_f32 {x0}, -v8, v6, {x0}')
        a(f'v_fma_f32 {x1}, -v9, v6, {x1}')
        a(f'v_fma_f32 v8, {x0}, v7, v8')
        a(f'v_fma_f32 v9, {x1}, v7, v9')
        a(f'v_cvt_pk_bf16_f32 v{16+i}, v8, v9')
    for q in range(8):
        a(f'buffer_store_dwordx4 v[{16+4*q}:{19+4*q}], v3, s[8:11], 0 offen offset:{128*q}')
    a('v_mul_u32_u24 v10, 1040, v1')
    a('v_lshl_add_u32 v10, v2, 4, v10')
    for q in range(8):
        a(f'ds_write_b128 v10, v[{16+4*q}:{19+4*q}] offset:{128*q}')
    a('s_waitcnt lgkmcnt(0)')
    a('s_barrier')
    a('v_lshlrev_b32 v10, 2, v0')
    for r in range(32):
        a(f'ds_read_b32 v{64+r}, v10 offset:{1040*r}')
    a('s_mov_b32 s14, 0x05040100')
    a('s_mov_b32 s15, 0x07060302')
    a('s_waitcnt lgkmcnt(0)')
    for k in range(16):
        a(f'v_perm_b32 v{16+k}, v{65+2*k}, v{64+2*k}, s14')
        a(f'v_perm_b32 v{32+k}, v{65+2*k}, v{64+2*k}, s15')
    a('s_lshl_b32 s12, s2, 6')
    a(f's_add_u32 s12, s12, {WS_XNT}')
    a('v_lshlrev_b32 v10, 13, v0')
    a('v_add_u32 v10, s12, v10')
    a('v_add_u32 v11, 4096, v10')
    for q in range(4):
        a(f'buffer_store_dwordx4 v[{16+4*q}:{19+4*q}], v10, s[8:11], 0 offen offset:{16*q}')
        a(f'buffer_store_dwordx4 v[{32+4*q}:{35+4*q}], v11, s[8:11], 0 offen offset:{16*q}')
    a('s_endpgm')
    RSB = 528; MSZ = 16 * RSB; SLOT = 4 * MSZ
    KD = 2 * SLOT
    a.lab('P_kgen')
    a(f's_cmp_ge_u32 s2, {N_LN + 512}')
    a('s_cbranch_scc1 P_pack')
    a(f's_sub_u32 s3, s2, {N_LN}')
    srd(a, 12, 38, 512 * 128 * 2)
    srd(a, 16, 40, 512 * 128 * 2)
    srd(a, 20, 42, 512 * 128 * 2)
    srd(a, 24, 44, 512 * 128 * 2)
    srd(a, 28, 46, 512 * 2)
    a('v_and_b32 v1, 127, v0')
    a('v_lshrrev_b32 v2, 7, v0')
    a('s_lshl_b32 s4, s3, 8')
    a('v_lshl_add_u32 v3, v1, 1, s4')
    a('s_lshl_b32 s5, s3, 1')
    a('v_mov_b32 v4, s5')
    a('buffer_load_ushort v5, v3, s[12:15], 0 offen')
    a('buffer_load_ushort v6, v3, s[16:19], 0 offen')
    a('buffer_load_ushort v7, v3, s[20:23], 0 offen')
    a('buffer_load_ushort v8, v3, s[24:27], 0 offen')
    a('buffer_load_ushort v9, v4, s[28:31], 0 offen')
    a(f's_mov_b32 s32, {f32hex(L2E_HI)}')
    a(f's_mov_b32 s33, {f32hex(L2E_LO)}')
    a(f's_mov_b32 s34, {f32hex(LN2)}')
    a(f's_mov_b32 s35, {f32hex(1/(2*3.141592653589793))}')
    a('s_waitcnt vmcnt(0)')
    for r in (5, 6, 7, 8, 9):
        a(f'v_lshlrev_b32 v{r}, 16, v{r}')
    exp_acc(a, 'v10', 'v9', 'v11', 'v12', 's32', 's33', 's34')
    bf16r(a, 'v10', 'v10')
    exp_acc(a, 'v13', 'v5', 'v11', 'v12', 's32', 's33', 's34')
    bf16r(a, 'v13', 'v13')
    a('v_mul_f32 v13, v13, v10')
    a('v_sub_f32 v13, 0, v13')
    a('v_mul_f32 v14, v6, v10')
    a('v_mul_f32 v15, v7, v10')
    a('v_mul_f32 v16, v8, v10')
    a(f'v_mul_u32_u24 v17, {SLOT}, v2')
    a('v_lshl_add_u32 v17, v1, 2, v17')
    def cexp(dr, di, p, t0, t1):
        a(f'v_mul_f32 {t0}, v13, {p}')
        a(f'v_mul_f32 {t0}, s32, {t0}')
        a(f'v_exp_f32 {t0}, {t0}')
        a(f'v_mul_f32 {t1}, v14, {p}')
        a(f'v_mul_f32 {t1}, s35, {t1}')
        a(f'v_fract_f32 {t1}, {t1}')
        a(f'v_cos_f32 {dr}, {t1}')
        a(f'v_sin_f32 {di}, {t1}')
        a('s_nop 1')
        a(f'v_mul_f32 {dr}, {dr}, {t0}')
        a(f'v_mul_f32 {di}, {di}, {t0}')
    def cmul(zr, zi, wr, wi, t0, t1):
        a(f'v_mul_f32 {t0}, {zi}, {wi}')
        a(f'v_mul_f32 {t1}, {zi}, {wr}')
        a(f'v_fma_f32 {t0}, {zr}, {wr}, -{t0}')
        a(f'v_fma_f32 {zi}, {zr}, {wi}, {t1}')
        a(f'v_mov_b32 {zr}, {t0}')
    def emit(zr, zi, off, neg):
        src_i = f'-{zi}' if neg else zi
        a(f'v_cvt_pk_bf16_f32 v34, {zr}, {src_i}')
        a('v_lshlrev_b32 v35, 16, v34')
        a('v_and_b32 v36, 0xffff0000, v34')
        a(f'v_sub_f32 v35, {zr}, v35')
        a(f'v_sub_f32 v36, {src_i}, v36')
        a('v_cvt_pk_bf16_f32 v35, v35, v36')
        a(f'ds_write_b32 v17, v34 offset:{off}')
        a(f'ds_write_b32 v17, v35 offset:{off + MSZ}')
    a('v_lshrrev_b32 v40, 6, v0')
    a('v_and_b32 v41, 63, v0')
    a('v_and_b32 v42, 1, v40')
    a('v_lshrrev_b32 v43, 1, v40')
    a(f'v_mul_u32_u24 v44, {SLOT}, v42')
    a('v_and_b32 v45, 15, v41')
    a(f'v_mul_u32_u24 v45, {RSB}, v45')
    a('v_add_u32 v44, v44, v45')
    a('v_lshrrev_b32 v45, 4, v41')
    a('v_lshl_add_u32 v44, v45, 4, v44')
    a('v_lshl_add_u32 v44, v43, 8, v44')
    for rnd in range(2):
        a(f'v_add_u32 v20, {2*rnd}, v2')
        a('v_lshlrev_b32 v21, v20, 1')
        a('v_cvt_f32_u32 v22, v21')
        a('v_mul_f32 v23, 16.0, v22')
        a('v_mul_f32 v24, 0x43000000, v22')
        a('v_cmp_eq_u32 vcc, 0, v20')
        a('s_nop 1')
        a('v_cndmask_b32 v24, v24, 0, vcc')
        cexp('v25', 'v26', 'v22', 'v30', 'v31')
        cexp('v27', 'v28', 'v23', 'v30', 'v31')
        cexp('v32', 'v33', 'v24', 'v30', 'v31')
        cmul('v32', 'v33', 'v15', 'v16', 'v30', 'v31')
        if rnd == 1:
            a('s_barrier')
        for i in range(16):
            emit('v32', 'v33', RSB * i, True)
            if i < 15: cmul('v32', 'v33', 'v27', 'v28', 'v30', 'v31')
        a('v_mov_b32 v32, 1.0')
        a('v_mov_b32 v33, 0')
        for j in range(16):
            emit('v32', 'v33', 2 * MSZ + RSB * j, False)
            if j < 15: cmul('v32', 'v33', 'v25', 'v26', 'v30', 'v31')
        a('s_waitcnt lgkmcnt(0)')
        a('s_barrier')
        for r in range(4): a(f'v_mov_b32 v{48+r}, 0')
        for ks in range(4):
            o = 64 * ks
            a(f'ds_read_b128 v[52:55], v44 offset:{o}')
            a(f'ds_read_b128 v[56:59], v44 offset:{MSZ + o}')
            a(f'ds_read_b128 v[60:63], v44 offset:{2*MSZ + o}')
            a(f'ds_read_b128 v[64:67], v44 offset:{3*MSZ + o}')
            a('s_waitcnt lgkmcnt(0)')
            a('v_mfma_f32_16x16x32_bf16 v[48:51], v[52:55], v[60:63], v[48:51]')
            a('v_mfma_f32_16x16x32_bf16 v[48:51], v[52:55], v[64:67], v[48:51]')
            a('v_mfma_f32_16x16x32_bf16 v[48:51], v[56:59], v[60:63], v[48:51]')
        a('s_nop 15')
        a('v_lshrrev_b32 v46, 4, v41')
        a('v_lshlrev_b32 v46, 8, v46')
        a('v_and_b32 v47, 15, v41')
        a('v_lshl_add_u32 v46, v47, 2, v46')
        a('v_lshl_add_u32 v46, v42, 10, v46')
        a('v_lshl_add_u32 v46, v43, 12, v46')
        a(f'v_add_u32 v46, {KD + 2048*rnd}, v46')
        for r in range(4):
            a(f'ds_write_b32 v46, v{48+r} offset:{64*r}')
    a('s_waitcnt lgkmcnt(0)')
    a('s_barrier')
    a('v_lshlrev_b32 v23, 3, v0')
    for e in range(9):
        a(f'v_sub_u32 v24, {2047 - e}, v23')
        a('v_cvt_f32_u32 v25, v24')
        a('v_bfe_u32 v26, v25, 16, 1')
        a('v_add_u32 v25, v25, v26')
        a('v_add_u32 v25, 0x7fff, v25')
        a('v_and_b32 v25, 0xffff0000, v25')
        a('v_lshrrev_b32 v26, 23, v25')
        a('v_cvt_u32_f32 v27, v25')
        a('v_subrev_u32 v26, 134, v26')
        a('v_max_i32 v26, 0, v26')
        a('v_min_i32 v26, 3, v26')
        a('v_lshrrev_b32 v27, v26, v27')
        a('v_cmp_eq_u32 vcc, 0, v26')
        a('v_subrev_u32 v28, 128, v27')
        a('s_nop 0')
        a('v_cndmask_b32 v27, v28, v27, vcc')
        a('v_and_b32 v27, 255, v27')
        a('v_lshl_add_u32 v27, v26, 8, v27')
        a('v_lshlrev_b32 v27, 2, v27')
        a(f'v_add_u32 v27, {KD}, v27')
        a(f'ds_read_b32 v{70+e}, v27')
        a(f'ds_read_b32 v{80+e}, v27 offset:4096')
    a('s_waitcnt lgkmcnt(0)')
    for e in range(9):
        a(f'v_add_f32 v{70+e}, v{70+e}, v{80+e}')
        a(f'v_add_f32 v{70+e}, v{70+e}, v{70+e}')
    a('v_cmp_eq_u32 vcc, 255, v0')
    a('s_nop 1')
    a('v_cndmask_b32 v78, v78, 0, vcc')
    for e in range(4):
        a(f'v_cvt_pk_bf16_f32 v{56+e}, v{70+2*e}, v{71+2*e}')
    a(f's_mul_i32 s4, s3, {KRS}')
    a(f's_add_u32 s5, s4, {WS_KR}')
    a('v_lshl_add_u32 v23, v0, 4, s5')
    a('buffer_store_dwordx4 v[56:59], v23, s[8:11], 0 offen')
    for r in range(64, 68): a(f'v_mov_b32 v{r}, 0')
    a('v_cmp_gt_u32 vcc, 16, v0')
    a('s_and_saveexec_b64 s[16:17], vcc')
    a('v_add_u32 v23, 4096, v23')
    a('buffer_store_dwordx4 v[64:67], v23, s[8:11], 0 offen')
    a('s_mov_b64 exec, s[16:17]')
    a('s_endpgm')
    a.lab('P_pack')
    a('s_load_dwordx2 s[16:17], s[0:1], 64')
    a('s_load_dwordx2 s[18:19], s[0:1], 80')
    a(f's_sub_u32 s3, s2, {N_LN + 512}')
    a('v_lshrrev_b32 v1, 6, v0')
    a('v_and_b32 v2, 63, v0')
    a('v_readfirstlane_b32 s4, v1')
    a('v_and_b32 v3, 31, v2')
    a('v_lshrrev_b32 v4, 5, v2')
    a('v_lshlrev_b32 v5, 4, v2')
    a('s_waitcnt lgkmcnt(0)')
    a('s_cmp_ge_u32 s3, 56')
    a('s_cbranch_scc1 P_pack2')
    srd(a, 12, 16, 512 * 1792 * 2)
    a('s_mov_b32 s20, 3584')
    a('s_mov_b32 s5, s3')
    a('s_lshl_b32 s6, s4, 3')
    a('s_mul_i32 s7, s5, 32')
    a('s_add_u32 s7, s7, s6')
    a('s_lshl_b32 s7, s7, 10')
    a(f's_add_u32 s7, s7, {WS_W1F}')
    a('s_branch P_packc')
    a.lab('P_pack2')
    srd(a, 12, 18, 1792 * 512 * 2)
    a('s_mov_b32 s20, 1024')
    a('s_sub_u32 s3, s3, 56')
    a('s_lshl_b32 s3, s3, 2')
    a('s_add_u32 s3, s3, s4')
    a('s_and_b32 s5, s3, 15')
    a('s_lshr_b32 s6, s3, 4')
    a('s_lshl_b32 s6, s6, 3')
    a('s_mul_i32 s7, s5, 112')
    a('s_add_u32 s7, s7, s6')
    a('s_lshl_b32 s7, s7, 10')
    a(f's_add_u32 s7, s7, {WS_W2F}')
    a.lab('P_packc')
    a('s_lshl_b32 s21, s20, 3')
    a('v_mul_lo_u32 v6, v4, s21')
    a('v_lshl_add_u32 v6, v3, 1, v6')
    a('s_lshl_b32 s5, s5, 6')
    a('v_add_u32 v6, s5, v6')
    a('s_lshl_b32 s6, s6, 4')
    a('s_mul_i32 s6, s6, s20')
    for f in range(8):
        for j in range(8):
            a(f'buffer_load_ushort v{64+8*f+j}, v6, s[12:15], s6 offen')
            a('s_add_u32 s6, s6, s20')
        a('s_add_u32 s6, s6, s21')
    for f in range(8):
        a(f's_waitcnt vmcnt({8*(7-f) + f})')
        for q in range(4):
            a(f'v_lshl_or_b32 v{16+4*f+q}, v{64+8*f+2*q+1}, 16, v{64+8*f+2*q}')
        a(f'buffer_store_dwordx4 v[{16+4*f}:{19+4*f}], v5, s[8:11], s7 offen')
        a('s_add_u32 s7, s7, 1024')
    a.lab('P_end')
    a('s_endpgm')
    return a.text(), KD + 8192
```

```python
from gen import A, srd, f32hex, WS_XN, WS_H, WS_SIZE, LOG2E
from gen3 import stamp
GC1 = -2 * 0.7978845608028654 * LOG2E
GC2 = GC1 * 0.044715
import os
GW = 0 if os.environ.get('STAMP')!='conv' else 99999
STG = 16384
GEMM_LDS = 3 * STG

def gemm1_body(a, wg_sreg):
    srd(a, 12, 52, 512 * 1792 * 2)
    srd(a, 16, 54, 1792 * 2)
    a(f's_and_b32 s4, {wg_sreg}, 7')
    a('s_lshl_b32 s4, s4, 1')
    a(f's_bfe_u32 s5, {wg_sreg}, 0x10003')
    a('s_add_u32 s4, s4, s5')
    a(f's_lshr_b32 s5, {wg_sreg}, 4')
    a('s_lshl_b32 s6, s4, 17')
    a('s_lshl_b32 s7, s5, 8')
    a('v_lshrrev_b32 v1, 2, v0')
    a('v_and_b32 v2, 3, v0')
    a('v_lshlrev_b32 v3, 10, v1')
    a('v_lshl_add_u32 v3, v2, 4, v3')
    a('v_add_u32 v3, s6, v3')
    a('v_add_u32 v9, 65536, v3')
    a('v_bfe_u32 v4, v1, 2, 2')
    a('v_xor_b32 v4, v4, v2')
    a('v_lshlrev_b32 v4, 4, v4')
    a('v_lshl_add_u32 v4, v1, 6, v4')
    a('v_lshrrev_b32 v1, 4, v0')
    a('v_and_b32 v2, 15, v0')
    a('v_mul_u32_u24 v5, 3584, v1')
    a('v_lshl_add_u32 v5, v2, 4, v5')
    a('v_add_u32 v5, s7, v5')
    a(f'v_add_u32 v10, {16*3584}, v5')
    a('v_lshrrev_b32 v6, 2, v2')
    a('v_and_b32 v7, 3, v1')
    a('v_xor_b32 v6, v6, v7')
    a('v_lshlrev_b32 v6, 6, v6')
    a('v_and_b32 v7, 3, v2')
    a('v_lshl_add_u32 v6, v7, 4, v6')
    a('v_lshl_add_u32 v6, v1, 8, v6')
    a('v_add_u32 v6, 8192, v6')
    a('v_lshrrev_b32 v1, 6, v0')
    a('v_lshrrev_b32 v7, 1, v1')
    a('v_and_b32 v8, 1, v1')
    a('v_and_b32 v15, 31, v0')
    a('v_bfe_u32 v48, v0, 5, 1')
    a('v_lshlrev_b32 v53, 7, v8')
    a('v_lshl_add_u32 v53, v48, 3, v53')
    a('v_add_u32 v53, s7, v53')
    stamp(a, 0, 54, GW)
    NS = 6
    def gload(kt):
        st = 96 + 16 * (kt % NS)
        a(f's_mov_b32 s20, {kt*64}')
        a(f's_mov_b32 s21, {kt*32*3584}')
        return [f'buffer_load_dwordx4 v[{st}:{st+3}], v3, s[8:11], s20 offen',
                f'buffer_load_dwordx4 v[{st+4}:{st+7}], v9, s[8:11], s20 offen',
                f'buffer_load_dwordx4 v[{st+8}:{st+11}], v5, s[12:15], s21 offen',
                f'buffer_load_dwordx4 v[{st+12}:{st+15}], v10, s[12:15], s21 offen']
    for kt in range(2):
        for x in gload(kt): a(x)
    for nt in range(2):
        for rq in range(4):
            a(f'buffer_load_dwordx2 v[{56+8*nt+2*rq}:{57+8*nt+2*rq}], v53, s[16:19], 0 offen offset:{64*nt+16*rq}')
    for kt in range(2, NS):
        for x in gload(kt): a(x)
    a('v_lshl_add_u32 v49, v7, 6, v15')
    a('v_bfe_u32 v50, v15, 2, 2')
    a('v_xor_b32 v50, v50, v48')
    a('v_lshlrev_b32 v50, 4, v50')
    a('v_lshl_add_u32 v49, v49, 6, v50')
    a('v_xor_b32 v11, 32, v49')
    a('v_bfe_u32 v50, v0, 2, 2')
    a('v_lshl_add_u32 v51, v48, 3, v50')
    a('v_lshlrev_b32 v51, 8, v51')
    a('v_lshlrev_b32 v52, 1, v8')
    a('v_xor_b32 v52, v52, v50')
    a('v_lshl_add_u32 v51, v52, 6, v51')
    a('v_bfe_u32 v52, v0, 4, 1')
    a('v_lshl_add_u32 v51, v52, 5, v51')
    a('v_and_b32 v52, 3, v0')
    a('v_lshl_add_u32 v51, v52, 3, v51')
    a('v_add_u32 v50, 8192, v51')
    a('v_xor_b32 v12, 64, v50')
    for r in range(64): a(f'v_mov_b32 v{192+r}, 0')
    def lwrite(kt):
        st = 96 + 16 * (kt % NS); sb = (kt % 3) * STG
        return [f'ds_write_b128 v4, v[{st}:{st+3}] offset:{sb}',
                f'ds_write_b128 v4, v[{st+4}:{st+7}] offset:{sb+4096}',
                f'ds_write_b128 v6, v[{st+8}:{st+11}] offset:{sb}',
                f'ds_write_b128 v6, v[{st+12}:{st+15}] offset:{sb+4096}']
    def frd(kt, kk, fs):
        fa = 16 + 16 * fs; sb = (kt % 3) * STG
        va = 'v49' if kk == 0 else 'v11'
        L = []
        for mt in range(2):
            L.append(f'ds_read_b128 v[{fa+4*mt}:{fa+3+4*mt}], {va} offset:{sb + mt*2048}')
        for nt in range(2):
            vb = 'v50' if nt == 0 else 'v12'
            for u in range(2):
                L.append(f'ds_read_b64_tr_b16 v[{fa+8+4*nt+2*u}:{fa+9+4*nt+2*u}], {vb} offset:{sb + (kk*16+4*u)*256}')
        return L
    def mm(fs, j):
        fa = 16 + 16 * fs
        mt, nt = j >> 1, j & 1
        acc = 192 + 16 * (2 * mt + nt)
        return f'v_mfma_f32_32x32x16_bf16 v[{acc}:{acc+15}], v[{fa+8+4*nt}:{fa+11+4*nt}], v[{fa+4*mt}:{fa+3+4*mt}], v[{acc}:{acc+15}]'
    a(f's_waitcnt vmcnt({8 + 4*(NS-2) + 4})')
    stamp(a, 1, 54, GW)
    for x in lwrite(0): a(x)
    a(f's_waitcnt vmcnt({8 + 4*(NS-2)})')
    for x in lwrite(1): a(x)
    a('s_waitcnt lgkmcnt(0)')
    a('s_barrier')
    for x in frd(0, 0, 0): a(x)
    NT = 16
    for kt in range(NT):
        if kt % 2 == 0: stamp(a, 2 + kt // 2, 54, GW)
        W = lwrite(kt + 2) if kt + 2 < NT else []
        G = gload(kt + NS) if kt + NS < NT else []
        F1 = frd(kt, 1, 1)
        F0 = frd(kt + 1, 0, 0) if kt + 1 < NT else []
        a('s_waitcnt lgkmcnt(0)')
        a(mm(0, 0))
        for x in F1[:3]: a(x)
        a(mm(0, 1))
        for x in F1[3:]: a(x)
        if W:
            newer = 4 * (min(NT - 1, kt + NS - 1) - (kt + 2))
            a(f's_waitcnt vmcnt({newer})')
            for x in W[:2]: a(x)
        a(mm(0, 2))
        for x in W[2:]: a(x)
        a(mm(0, 3))
        a(f's_waitcnt lgkmcnt({len(W)})')
        a(mm(1, 0))
        for x in G[:2]: a(x)
        a(mm(1, 1))
        for x in G[2:]: a(x)
        for x in F0[:3]: a(x)
        a(mm(1, 2))
        for x in F0[3:]: a(x)
        a(mm(1, 3))
        if kt + 1 < NT:
            a(f's_waitcnt lgkmcnt({len(F0)})')
            a('s_barrier')
    stamp(a, 10, 54, GW)
    a(f'v_mov_b32 v16, {f32hex(GC1)}')
    a(f'v_mov_b32 v17, {f32hex(GC1)}')
    a(f's_mov_b32 s22, {f32hex(GC2)}')
    a(f's_mov_b32 s23, {f32hex(GC2)}')
    a('v_mov_b32 v18, 1.0')
    a('v_mov_b32 v19, 1.0')
    HF = True
    a('v_readfirstlane_b32 s24, v7')
    a('v_readfirstlane_b32 s25, v8')
    a('v_and_b32 v20, 63, v0')
    a('v_lshlrev_b32 v20, 4, v20')
    a('s_lshl_b32 s26, s4, 2')
    a('s_lshl_b32 s24, s24, 1')
    a('s_add_u32 s26, s26, s24')
    a('s_mul_i32 s26, s26, 112')
    a('s_lshl_b32 s27, s5, 3')
    a('s_add_u32 s26, s26, s27')
    a('s_lshl_b32 s25, s25, 2')
    a('s_add_u32 s26, s26, s25')
    a('s_lshl_b32 s26, s26, 10')
    a(f's_add_u32 s26, s26, {WS_H}')
    a(f's_add_u32 s27, s26, {112*1024}')
    for i in range(16):
        a(f'v_lshlrev_b32 v{96+2*i}, 16, v{56+i}')
        a(f'v_and_b32 v{97+2*i}, 0xffff0000, v{56+i}')
    for mt in range(2):
        for nt in range(2):
            acc = 192 + 16 * (2 * mt + nt)
            for rq in range(4):
                regs = []
                for p in range(2):
                    b = 96 + 16 * nt + 4 * rq + 2 * p
                    y0 = acc + 4 * rq + 2 * p
                    P = 24 + 4 * p; Q = 26 + 4 * p; T = 32 + p
                    regs.append((b, y0, P, Q, T))
                for (b, y0, P, Q, T) in regs:
                    a(f'v_cvt_pk_bf16_f32 v{T}, v{y0}, v{y0+1}')
                for (b, y0, P, Q, T) in regs:
                    a(f'v_lshlrev_b32 v{P}, 16, v{T}')
                    a(f'v_and_b32 v{P+1}, 0xffff0000, v{T}')
                for (b, y0, P, Q, T) in regs:
                    a(f'v_pk_add_f32 v[{P}:{P+1}], v[{P}:{P+1}], v[{b}:{b+1}]')
                for (b, y0, P, Q, T) in regs:
                    a(f'v_cvt_pk_bf16_f32 v{T}, v{P}, v{P+1}')
                for (b, y0, P, Q, T) in regs:
                    a(f'v_lshlrev_b32 v{P}, 16, v{T}')
                    a(f'v_and_b32 v{P+1}, 0xffff0000, v{T}')
                for (b, y0, P, Q, T) in regs:
                    a(f'v_pk_mul_f32 v[{Q}:{Q+1}], v[{P}:{P+1}], v[{P}:{P+1}]')
                for (b, y0, P, Q, T) in regs:
                    a(f'v_pk_fma_f32 v[{Q}:{Q+1}], v[{Q}:{Q+1}], s[22:23], v[16:17]')
                for (b, y0, P, Q, T) in regs:
                    a(f'v_pk_mul_f32 v[{Q}:{Q+1}], v[{Q}:{Q+1}], v[{P}:{P+1}]')
                for (b, y0, P, Q, T) in regs:
                    a(f'v_exp_f32 v{Q}, v{Q}')
                    a(f'v_exp_f32 v{Q+1}, v{Q+1}')
                for (b, y0, P, Q, T) in regs:
                    a(f'v_pk_add_f32 v[{Q}:{Q+1}], v[{Q}:{Q+1}], v[18:19]')
                for (b, y0, P, Q, T) in regs:
                    a(f'v_rcp_f32 v{Q}, v{Q}')
                    a(f'v_rcp_f32 v{Q+1}, v{Q+1}')
                for (b, y0, P, Q, T) in regs:
                    a(f'v_pk_mul_f32 v[{P}:{P+1}], v[{P}:{P+1}], v[{Q}:{Q+1}]')
                ob = 128 + 4 * ((2 * nt + (rq >> 1)) & 3) + 16 * mt
                o = ob + 2 * (rq & 1)
                for p, (b, y0, P, Q, T) in enumerate(regs):
                    a(f'v_cvt_pk_bf16_f32 v{o + p}, v{P}, v{P+1}')
                if rq & 1:
                    a('s_nop 1')
                    a(f'v_permlane32_swap_b32 v{ob}, v{ob+2}')
                    a(f'v_permlane32_swap_b32 v{ob+1}, v{ob+3}')
                    a(f'buffer_store_dwordx4 v[{ob}:{ob+3}], v20, s[8:11], s{26+mt} offen offset:{1024*(2*nt+(rq>>1))}')
```

```python
from gen import A, srd, f32hex, WS_AT, WS_H, WS_SIZE
from gen3 import stamp
import os
WST = 8192
ATB = 4 * 2 * WST
FIN_LDS = ATB + 64 * 192

def gen_fin3():
    a = A()
    a('s_cmp_ge_u32 s2, 256')
    a('s_cbranch_scc1 F_end')
    a('s_load_dwordx2 s[36:37], s[0:1], 0')
    a('s_load_dwordx8 s[52:59], s[0:1], 64')
    a('s_load_dwordx4 s[60:63], s[0:1], 96')
    a('s_load_dwordx2 s[64:65], s[0:1], 112')
    fin3_body(a)
    a.lab('F_end')
    a('s_endpgm')
    return a.text()

def fin3_body(a):
    a('s_and_b32 s4, s2, 7')
    a('s_lshl_b32 s4, s4, 2')
    a('s_bfe_u32 s5, s2, 0x20003')
    a('s_add_u32 s4, s4, s5')
    a('s_lshr_b32 s5, s2, 5')
    a('v_lshrrev_b32 v1, 6, v0')
    a('v_and_b32 v2, 63, v0')
    a('s_waitcnt lgkmcnt(0)')
    a('v_readfirstlane_b32 s28, v1')
    srd(a, 8, 64, WS_SIZE)
    srd(a, 12, 56, 1792 * 512 * 2)
    srd(a, 16, 58, 512 * 2)
    srd(a, 20, 36, 2048 * 512 * 2)
    srd(a, 24, 60, 2048 * 512 * 2)
    srd(a, 84, 62, 256)
    stamp(a, 0)
    a('v_and_b32 v9, 31, v2')
    a('v_bfe_u32 v10, v2, 5, 1')
    a('v_lshrrev_b32 v7, 1, v1')
    a('v_and_b32 v8, 1, v1')
    a('v_lshl_add_u32 v17, v7, 5, v9')
    a('s_lshl_b32 s6, s4, 6')
    a('s_lshl_b32 s7, s5, 7')
    a('v_add_u32 v17, s6, v17')
    a('v_lshlrev_b32 v16, 6, v8')
    a('v_lshl_add_u32 v16, v10, 3, v16')
    a('v_add_u32 v16, s7, v16')
    a('v_lshl_add_u32 v18, v17, 10, v16')
    a('v_lshrrev_b32 v3, 3, v0')
    a('v_and_b32 v4, 7, v0')
    a('v_lshlrev_b32 v5, 12, v3')
    a('v_lshl_add_u32 v5, v4, 4, v5')
    a('s_lshl_b32 s8, s5, 18') if False else None
    a('s_lshl_b32 s30, s5, 18')
    a('s_lshl_b32 s31, s4, 7')
    a('s_add_u32 s30, s30, s31')
    a(f's_add_u32 s30, s30, {WS_AT}')
    a(f's_add_u32 s31, s30, {32*4096}')
    a('buffer_load_dwordx4 v[224:227], v5, s[8:11], s30 offen')
    a('buffer_load_dwordx4 v[228:231], v5, s[8:11], s31 offen')
    a('v_mul_u32_u24 v19, 192, v3')
    a('v_lshl_add_u32 v19, v4, 4, v19')
    for rq in range(4):
        a(f'buffer_load_dwordx2 v[{232+2*rq}:{233+2*rq}], v16, s[16:19], 0 offen offset:{16*rq}')
        a(f'buffer_load_dwordx2 v[{240+2*rq}:{241+2*rq}], v18, s[20:23], 0 offen offset:{16*rq}')
    a('v_lshrrev_b32 v11, 2, v2')
    a('v_and_b32 v12, 3, v2')
    a(f's_mul_i32 s6, s4, {64*3584}')
    a(f's_mul_i32 s29, s28, 896')
    a('s_add_u32 s6, s6, s29')
    a(f's_add_u32 s6, s6, {WS_H}')
    a('v_mul_u32_u24 v3, 3584, v11')
    a('v_lshl_add_u32 v3, v12, 4, v3')
    a('v_bfe_u32 v4, v11, 2, 2')
    a('v_xor_b32 v4, v4, v12')
    a('v_lshlrev_b32 v4, 4, v4')
    a('v_lshl_add_u32 v4, v11, 6, v4')
    a(f's_mul_i32 s40, s28, {2*WST}')
    a('v_add_u32 v4, s40, v4')
    a('v_lshrrev_b32 v11, 3, v2')
    a('v_and_b32 v12, 7, v2')
    a('v_lshlrev_b32 v5, 10, v11')
    a('v_lshl_add_u32 v5, v12, 4, v5')
    a(f's_mul_i32 s41, s28, {448*1024}')
    a('s_add_u32 s41, s41, s7')
    a('v_lshrrev_b32 v6, 1, v11')
    a('v_xor_b32 v6, v6, v11')
    a('v_and_b32 v6, 1, v6')
    a('v_lshrrev_b32 v13, 2, v12')
    a('v_xor_b32 v6, v6, v13')
    a('v_lshlrev_b32 v6, 6, v6')
    a('v_and_b32 v13, 3, v12')
    a('v_lshl_add_u32 v6, v13, 4, v6')
    a('v_lshl_add_u32 v6, v11, 7, v6')
    a('v_add_u32 v6, 4096, v6')
    a('v_add_u32 v6, s40, v6')
    for q in range(1, 4):
        a(f'v_add_u32 v{20+q}, {16*3584*q}, v3')
        a(f'v_add_u32 v{24+q}, {8*1024*q}, v5')
    NS = 3
    SB = 128
    def gload(i):
        st = SB + 32 * (i % NS)
        a(f's_add_u32 s30, s6, {64*i}')
        a(f's_add_u32 s31, s41, {32*1024*i}')
        L = []
        for q in range(4):
            va = 'v3' if q == 0 else f'v{20+q}'
            L.append(f'buffer_load_dwordx4 v[{st+4*q}:{st+3+4*q}], {va}, s[8:11], s30 offen')
        for q in range(4):
            vb = 'v5' if q == 0 else f'v{24+q}'
            L.append(f'buffer_load_dwordx4 v[{st+16+4*q}:{st+19+4*q}], {vb}, s[12:15], s31 offen')
        return L
    for i in range(NS):
        for x in gload(i): a(x)
    a('v_bfe_u32 v12, v9, 2, 2')
    a('v_xor_b32 v12, v12, v10')
    a('v_lshlrev_b32 v12, 4, v12')
    a('v_lshl_add_u32 v11, v9, 6, v12')
    a('v_add_u32 v11, s40, v11')
    a('v_xor_b32 v14, 32, v11')
    a('v_bfe_u32 v12, v2, 2, 2')
    a('v_lshrrev_b32 v13, 1, v12')
    a('v_xor_b32 v13, v13, v12')
    a('v_and_b32 v13, 1, v13')
    a('v_lshl_add_u32 v12, v10, 3, v12')
    a('v_lshlrev_b32 v12, 7, v12')
    a('v_lshl_add_u32 v12, v13, 6, v12')
    a('v_bfe_u32 v13, v2, 4, 1')
    a('v_lshl_add_u32 v12, v13, 5, v12')
    a('v_and_b32 v13, 3, v2')
    a('v_lshl_add_u32 v12, v13, 3, v12')
    a('v_add_u32 v12, 4096, v12')
    a('v_add_u32 v12, s40, v12')
    a('v_xor_b32 v15, 64, v12')
    for r in range(64): a(f'v_mov_b32 v{64+r}, 0')
    def lwrite(i):
        st = SB + 32 * (i % NS); sb = (i & 1) * WST
        L = []
        for q in range(4): L.append(f'ds_write_b128 v4, v[{st+4*q}:{st+3+4*q}] offset:{sb + 1024*q}')
        for q in range(4): L.append(f'ds_write_b128 v6, v[{st+16+4*q}:{st+19+4*q}] offset:{sb + 1024*q}')
        return L
    def frd(i, kk, fs):
        fa = 28 + 16 * fs; sb = (i & 1) * WST
        va = 'v11' if kk == 0 else 'v14'
        L = []
        for mt in range(2):
            L.append(f'ds_read_b128 v[{fa+4*mt}:{fa+3+4*mt}], {va} offset:{sb + mt*2048}')
        for nt in range(2):
            vb = 'v12' if nt == 0 else 'v15'
            for u in range(2):
                L.append(f'ds_read_b64_tr_b16 v[{fa+8+4*nt+2*u}:{fa+9+4*nt+2*u}], {vb} offset:{sb + (kk*16+4*u)*128}')
        return L
    def mm(fs, j):
        fa = 28 + 16 * fs
        mt, nt = j >> 1, j & 1
        acc = 64 + 16 * (2 * mt + nt)
        return f'v_mfma_f32_32x32x16_bf16 v[{acc}:{acc+15}], v[{fa+8+4*nt}:{fa+11+4*nt}], v[{fa+4*mt}:{fa+3+4*mt}], v[{acc}:{acc+15}]'
    NT = 14
    a(f's_waitcnt vmcnt({8 + 8*NS})')
    a(f'ds_write_b128 v19, v[224:227] offset:{ATB}') if False else None
    a(f'v_add_u32 v19, {ATB}, v19')
    a('ds_write_b128 v19, v[224:227]')
    a(f'ds_write_b128 v19, v[228:231] offset:{32*192}')
    a(f's_waitcnt vmcnt({8*(NS-1)})')
    stamp(a, 1)
    for x in lwrite(0): a(x)
    for x in frd(0, 0, 0): a(x)
    for i in range(NT):
        if i % 2 == 0: stamp(a, 2 + i // 2)
        W = lwrite(i + 1) if i + 1 < NT else []
        G = gload(i + 1 + NS - 1 + 0) if False else (gload(i + NS) if i + NS < NT else [])
        F1 = frd(i, 1, 1)
        F0 = frd(i + 1, 0, 0) if i + 1 < NT else []
        a('s_waitcnt lgkmcnt(0)')
        a(mm(0, 0))
        for x in F1[:3]: a(x)
        a(mm(0, 1))
        for x in F1[3:]: a(x)
        for x in G[:4]: a(x)
        a(mm(0, 2))
        for x in G[4:]: a(x)
        if W:
            newer = 8 * (min(NT - 1, i + NS) - (i + 1))
            a(f's_waitcnt vmcnt({newer})')
            for x in W[:2]: a(x)
        a(mm(0, 3))
        for x in W[2:4]: a(x)
        a(f's_waitcnt lgkmcnt({min(len(W), 4)})')
        a(mm(1, 0))
        for x in W[4:6]: a(x)
        a(mm(1, 1))
        for x in W[6:8]: a(x)
        a(mm(1, 2))
        for x in F0: a(x)
        a(mm(1, 3))
    stamp(a, 9)
    a('s_nop 7')
    a('s_nop 7')
    a('s_barrier')
    a('v_lshlrev_b32 v16, 4, v2')
    a('v_lshl_add_u32 v17, v1, 14, v16')
    for r4 in range(16):
        a(f'ds_write_b128 v17, v[{64+4*r4}:{67+4*r4}] offset:{1024*r4}')
    a('v_bfe_u32 v20, v2, 2, 2')
    a('v_lshl_add_u32 v20, v10, 2, v20')
    a('v_lshl_add_u32 v20, v8, 5, v20')
    a('v_mul_u32_u24 v20, 192, v20')
    a('v_bfe_u32 v21, v2, 4, 1')
    a('v_lshl_add_u32 v20, v21, 5, v20')
    a('v_and_b32 v21, 3, v2')
    a('v_lshl_add_u32 v20, v21, 3, v20')
    a('v_lshl_add_u32 v20, v7, 6, v20')
    a(f'v_add_u32 v20, {ATB}, v20')
    a('s_waitcnt lgkmcnt(0)')
    a('s_barrier')
    a('v_lshl_add_u32 v17, v1, 12, v16')
    for src in range(4):
        for r4 in range(4):
            a(f'ds_read_b128 v[{128+16*src+4*r4}:{131+16*src+4*r4}], v17 offset:{16384*src + 1024*r4}')
    for rq in range(4):
        a(f'ds_read_b64_tr_b16 v[{48+2*rq}:{49+2*rq}], v20 offset:{8*192*rq}')
    a('s_waitcnt lgkmcnt(4)')
    for r in range(16):
        a(f'v_add_f32 v{128+r}, v{128+r}, v{144+r}')
        a(f'v_add_f32 v{160+r}, v{160+r}, v{176+r}')
        a(f'v_add_f32 v{64+r}, v{128+r}, v{160+r}')
    stamp(a, 10)
    a('s_waitcnt lgkmcnt(0)')
    for rq in range(4):
        for p in range(2):
            y0, y1 = 64 + 4 * rq + 2 * p, 65 + 4 * rq + 2 * p
            b, x, at = 232 + 2 * rq + p, 240 + 2 * rq + p, 48 + 2 * rq + p
            a(f'v_cvt_pk_bf16_f32 v20, v{y0}, v{y1}')
            a('v_lshlrev_b32 v21, 16, v20')
            a('v_and_b32 v22, 0xffff0000, v20')
            a(f'v_lshlrev_b32 v23, 16, v{b}')
            a(f'v_and_b32 v24, 0xffff0000, v{b}')
            a('v_add_f32 v21, v21, v23')
            a('v_add_f32 v22, v22, v24')
            a('v_cvt_pk_bf16_f32 v20, v21, v22')
            a('v_lshlrev_b32 v21, 16, v20')
            a('v_and_b32 v22, 0xffff0000, v20')
            a(f'v_lshlrev_b32 v23, 16, v{x}')
            a(f'v_and_b32 v24, 0xffff0000, v{x}')
            a(f'v_lshlrev_b32 v25, 16, v{at}')
            a(f'v_and_b32 v26, 0xffff0000, v{at}')
            a('v_add_f32 v23, v23, v25')
            a('v_add_f32 v24, v24, v26')
            a('v_cvt_pk_bf16_f32 v20, v23, v24')
            a('v_lshlrev_b32 v23, 16, v20')
            a('v_and_b32 v24, 0xffff0000, v20')
            a('v_add_f32 v23, v23, v21')
            a('v_add_f32 v24, v24, v22')
            a(f'v_cvt_pk_bf16_f32 v{28+2*(rq&1)+p}, v23, v24')
        o = 28 + 2 * (rq & 1)
        a(f'buffer_store_dwordx2 v[{o}:{o+1}], v18, s[24:27], 0 offen offset:{16*rq}')
    if os.environ.get('STAMP'):
        a('s_waitcnt vmcnt(0)')
    stamp(a, 11)
```

```python
from gen import A, srd, f32hex, WS_AT, WS_H, WS_SIZE, WS_W2F
from gen3 import stamp
import os
ATB = 65536
FIN_LDS = ATB + 64 * 192
ND = 9

def fin4_body(a):
    a('s_and_b32 s4, s2, 7')
    a('s_lshl_b32 s4, s4, 2')
    a('s_bfe_u32 s5, s2, 0x20003')
    a('s_add_u32 s4, s4, s5')
    a('s_lshr_b32 s5, s2, 5')
    a('v_lshrrev_b32 v1, 6, v0')
    a('v_and_b32 v2, 63, v0')
    a('v_lshlrev_b32 v3, 4, v2')
    a('v_readfirstlane_b32 s28, v1')
    a('s_waitcnt lgkmcnt(0)')
    srd(a, 8, 64, WS_SIZE)
    a('s_mul_i32 s6, s4, 224')
    a('s_mul_i32 s7, s28, 28')
    a('s_add_u32 s6, s6, s7')
    a('s_lshl_b32 s6, s6, 10')
    a(f's_add_u32 s40, s6, {WS_H}')
    a(f's_add_u32 s41, s40, {112*1024}')
    a('s_mul_i32 s6, s5, 224')
    a('s_add_u32 s6, s6, s7')
    a('s_lshl_b32 s6, s6, 10')
    a(f's_add_u32 s42, s6, {WS_W2F}')
    a(f's_add_u32 s43, s42, {112*1024}')
    SB = 96
    def gload(s):
        st = SB + 16 * (s % ND)
        L = []
        if s % 4 == 0 and s > 0:
            for r in (40, 41, 42, 43): L.append(f's_add_u32 s{r}, s{r}, 4096')
        for j in range(4):
            L.append(f'buffer_load_dwordx4 v[{st+4*j}:{st+3+4*j}], v3, s[8:11], s{40+j} offen offset:{1024*(s%4)}')
        return L
    for s in range(ND):
        for x in gload(s): a(x)
    srd(a, 12, 56, 1792 * 512 * 2)
    srd(a, 16, 58, 512 * 2)
    srd(a, 20, 36, 2048 * 512 * 2)
    srd(a, 24, 60, 2048 * 512 * 2)
    srd(a, 84, 62, 256)
    a('v_and_b32 v9, 31, v2')
    a('v_bfe_u32 v10, v2, 5, 1')
    a('v_lshrrev_b32 v7, 1, v1')
    a('v_and_b32 v8, 1, v1')
    a('v_lshl_add_u32 v17, v7, 5, v9')
    a('s_lshl_b32 s6, s4, 6')
    a('s_lshl_b32 s7, s5, 7')
    a('v_add_u32 v17, s6, v17')
    a('v_lshlrev_b32 v16, 6, v8')
    a('v_lshl_add_u32 v16, v10, 3, v16')
    a('v_add_u32 v16, s7, v16')
    a('v_lshl_add_u32 v18, v17, 10, v16')
    a('v_lshrrev_b32 v4, 3, v0')
    a('v_and_b32 v5, 7, v0')
    a('v_lshlrev_b32 v6, 12, v4')
    a('v_lshl_add_u32 v6, v5, 4, v6')
    a('s_lshl_b32 s30, s5, 18')
    a('s_lshl_b32 s31, s4, 7')
    a('s_add_u32 s30, s30, s31')
    a(f's_add_u32 s30, s30, {WS_AT}')
    a(f's_add_u32 s31, s30, {32*4096}')
    a('v_mul_u32_u24 v19, 192, v4')
    a('v_lshl_add_u32 v19, v5, 4, v19')
    a(f'v_add_u32 v19, {ATB}, v19')
    for r in range(64): a(f'v_mov_b32 v{32+r}, 0')
    def mm(s, j):
        st = SB + 16 * (s % ND)
        mt, nt = j >> 1, j & 1
        acc = 32 + 16 * (2 * mt + nt)
        return f'v_mfma_f32_32x32x16_bf16 v[{acc}:{acc+15}], v[{st+8+4*nt}:{st+11+4*nt}], v[{st+4*mt}:{st+3+4*mt}], v[{acc}:{acc+15}]'
    NT = 28
    stamp(a, 0)
    late = []
    LS = NT - ND
    for s in range(NT):
        if s % 4 == 0: stamp(a, 1 + s // 4)
        newer = 4 * (min(NT - 1, s + ND - 1) - s) + (10 if s >= LS else 0)
        a(f's_waitcnt vmcnt({newer})')
        for j in range(4): a(mm(s, j))
        if s + ND < NT:
            for x in gload(s + ND): a(x)
        if s == LS - 1:
            a('buffer_load_dwordx4 v[240:243], v6, s[8:11], s30 offen')
            a('buffer_load_dwordx4 v[244:247], v6, s[8:11], s31 offen')
            for rq in range(4):
                a(f'buffer_load_dwordx2 v[{20+2*rq}:{21+2*rq}], v16, s[16:19], 0 offen offset:{16*rq}')
                a(f'buffer_load_dwordx2 v[{248+2*rq}:{249+2*rq}], v18, s[20:23], 0 offen offset:{16*rq}')
    stamp(a, 9)
    a('s_nop 7')
    a('s_nop 7')
    a('v_lshlrev_b32 v16, 4, v2')
    a('v_lshl_add_u32 v17, v1, 14, v16')
    for r4 in range(16):
        a(f'ds_write_b128 v17, v[{32+4*r4}:{35+4*r4}] offset:{1024*r4}')
    a('s_waitcnt vmcnt(0)')
    a('ds_write_b128 v19, v[240:243]')
    a(f'ds_write_b128 v19, v[244:247] offset:{32*192}')
    a('v_bfe_u32 v6, v2, 2, 2')
    a('v_lshl_add_u32 v6, v10, 2, v6')
    a('v_lshl_add_u32 v6, v8, 5, v6')
    a('v_mul_u32_u24 v6, 192, v6')
    a('v_bfe_u32 v4, v2, 4, 1')
    a('v_lshl_add_u32 v6, v4, 5, v6')
    a('v_and_b32 v4, 3, v2')
    a('v_lshl_add_u32 v6, v4, 3, v6')
    a('v_lshl_add_u32 v6, v7, 6, v6')
    a(f'v_add_u32 v6, {ATB}, v6')
    a('s_waitcnt lgkmcnt(0)')
    a('s_barrier')
    a('v_lshl_add_u32 v17, v1, 12, v16')
    for src in range(4):
        for r4 in range(4):
            a(f'ds_read_b128 v[{128+16*src+4*r4}:{131+16*src+4*r4}], v17 offset:{16384*src + 1024*r4}')
    for rq in range(4):
        a(f'ds_read_b64_tr_b16 v[{96+2*rq}:{97+2*rq}], v6 offset:{8*192*rq}')
    a('s_waitcnt lgkmcnt(4)')
    for r in range(16):
        a(f'v_add_f32 v{128+r}, v{128+r}, v{144+r}')
        a(f'v_add_f32 v{160+r}, v{160+r}, v{176+r}')
        a(f'v_add_f32 v{64+r}, v{128+r}, v{160+r}')
    stamp(a, 10)
    a('s_waitcnt lgkmcnt(0)')
    for rq in range(4):
        for p in range(2):
            y0, y1 = 64 + 4 * rq + 2 * p, 65 + 4 * rq + 2 * p
            b, x, at = 20 + 2 * rq + p, 248 + 2 * rq + p, 96 + 2 * rq + p
            a(f'v_cvt_pk_bf16_f32 v110, v{y0}, v{y1}')
            a('v_lshlrev_b32 v111, 16, v110')
            a('v_and_b32 v112, 0xffff0000, v110')
            a(f'v_lshlrev_b32 v113, 16, v{b}')
            a(f'v_and_b32 v114, 0xffff0000, v{b}')
            a('v_add_f32 v111, v111, v113')
            a('v_add_f32 v112, v112, v114')
            a('v_cvt_pk_bf16_f32 v110, v111, v112')
            a('v_lshlrev_b32 v111, 16, v110')
            a('v_and_b32 v112, 0xffff0000, v110')
            a(f'v_lshlrev_b32 v113, 16, v{x}')
            a(f'v_and_b32 v114, 0xffff0000, v{x}')
            a(f'v_lshlrev_b32 v115, 16, v{at}')
            a(f'v_and_b32 v116, 0xffff0000, v{at}')
            a('v_add_f32 v113, v113, v115')
            a('v_add_f32 v114, v114, v116')
            a('v_cvt_pk_bf16_f32 v110, v113, v114')
            a('v_lshlrev_b32 v113, 16, v110')
            a('v_and_b32 v114, 0xffff0000, v110')
            a('v_add_f32 v113, v113, v111')
            a('v_add_f32 v114, v114, v112')
            a(f'v_cvt_pk_bf16_f32 v{120+2*(rq&1)+p}, v113, v114')
        o = 120 + 2 * (rq & 1)
        a(f'buffer_store_dwordx2 v[{o}:{o+1}], v18, s[24:27], 0 offen offset:{16*rq}')
    stamp(a, 11)
```

```python
from gen import A, srd, f32hex, bf16r, WS_XN, WS_XNT, WS_KR, WS_AT, WS_H, WS_SIZE, LOG2E
from gen3 import stamp
import os
KRS = 4352
GC1 = -2 * 0.7978845608028654 * LOG2E
GC2 = GC1 * 0.044715
NG = 224
CST = 4416
UB = 8 * CST
CONV_LDS = UB + 96 * 80
ASZ, BSZ = 128 * 144, 64 * 320
STG = ASZ + BSZ
GEMM_LDS = 2 * STG

def trace_end(a):
    if not os.environ.get('TRACE'): return
    a('s_waitcnt vmcnt(0)')
    a('s_memrealtime s[98:99]')
    a('s_waitcnt lgkmcnt(0)')
    a('v_mov_b32 v40, s96')
    a('v_mov_b32 v41, s98')
    a('s_lshl_b32 s20, s2, 3')
    a(f's_add_u32 s20, s20, {23<<20}')
    a('v_mov_b32 v42, s20')
    a('v_cmp_eq_u32 vcc, 0, v0')
    a('s_and_saveexec_b64 s[16:17], vcc')
    a('buffer_store_dwordx2 v[40:41], v42, s[8:11], 0 offen')
    a('s_mov_b64 exec, s[16:17]')

def conv_body(a, chan_sreg, nch=2):
    srd(a, 12, 48, 512 * 2)
    a(f's_mul_i32 s3, {chan_sreg}, {nch}')
    a(f's_mul_i32 s4, s3, {KRS}')
    a(f's_add_u32 s4, s4, {WS_KR}')
    a(f's_lshl_b32 s5, s3, 12')
    a(f's_add_u32 s6, s5, {WS_XNT}')
    a(f's_add_u32 s7, s5, {WS_AT}')
    a('v_lshlrev_b32 v1, 4, v0')
    a('v_add_u32 v2, 4096, v1')
    a(f's_lshl_b32 s5, s3, 1')
    a('v_mov_b32 v3, s5')
    for c in range(nch):
        R = 100 + 24 * c
        a(f's_add_u32 s20, s4, {KRS*c}')
        a(f's_add_u32 s21, s6, {4096*c}')
        a(f'buffer_load_dwordx4 v[{R}:{R+3}], v1, s[8:11], s20 offen')
        a(f'buffer_load_dwordx4 v[{R+4}:{R+7}], v1, s[8:11], s20 offen offset:16')
        a(f'buffer_load_dwordx4 v[{R+16}:{R+19}], v1, s[8:11], s21 offen')
        a(f'buffer_load_dwordx4 v[{R+8}:{R+11}], v2, s[8:11], s20 offen')
        a(f'buffer_load_dwordx4 v[{R+12}:{R+15}], v2, s[8:11], s20 offen offset:16')
        a(f'buffer_load_ushort v{R+20}, v3, s[12:15], 0 offen offset:{2*c}')
    for r in range(36, 40): a(f'v_mov_b32 v{r}, 0')
    a('v_cmp_gt_u32 vcc, 160, v0')
    a('s_and_saveexec_b64 s[16:17], vcc')
    a(f'ds_write_b128 v1, v[36:39] offset:{UB}')
    a('s_mov_b64 exec, s[16:17]')
    a('v_lshrrev_b32 v4, 2, v0')
    a('v_mul_u32_u24 v4, 80, v4')
    a('v_and_b32 v5, 3, v0')
    a('v_lshl_add_u32 v4, v5, 4, v4')
    a('v_and_b32 v6, 31, v0')
    a('v_bfe_u32 v7, v0, 5, 1')
    a('v_sub_u32 v8, 7, v6')
    a('v_and_b32 v8, 7, v8')
    a(f'v_mul_u32_u24 v8, {CST}, v8')
    a('v_sub_u32 v9, 2047, v6')
    a('v_lshrrev_b32 v9, 3, v9')
    a('v_add_u32 v9, v9, v7')
    a('v_lshl_add_u32 v8, v9, 4, v8')
    a(f'v_subrev_u32 v8, {64*63}, v8')
    a('v_mul_u32_u24 v9, 80, v6')
    a('v_lshl_add_u32 v9, v7, 4, v9')
    a(f'v_add_u32 v9, {UB - 31*80}, v9')
    a('v_lshrrev_b32 v10, 6, v0')
    a('v_and_b32 v11, 63, v0')
    a('v_lshlrev_b32 v11, 4, v11')
    a('v_readfirstlane_b32 s18, v10')
    a('v_lshl_add_u32 v96, v10, 13, v11')
    a('v_lshrrev_b32 v12, 1, v10')
    a('v_and_b32 v13, 1, v10')
    a('v_lshl_add_u32 v97, v12, 12, v11')
    a('v_lshl_add_u32 v97, v13, 11, v97')
    a('v_add_u32 v98, 24576, v97')
    a('v_cmp_eq_u32 vcc, 0, v12')
    a(f'v_add_u32 v99, {UB}, v11')
    a('s_nop 0')
    a('v_cndmask_b32 v98, v98, v99, vcc')
    a('v_lshl_add_u32 v14, v12, 5, v6')
    a('v_mul_u32_u24 v15, 80, v14')
    a('v_lshl_add_u32 v15, v7, 3, v15')
    a('v_lshl_add_u32 v15, v13, 5, v15')
    a('v_lshlrev_b32 v14, 6, v14')
    a('v_lshl_add_u32 v14, v7, 3, v14')
    a('v_lshl_add_u32 v14, v13, 5, v14')
    def shifted(D, vaddr):
        d = lambda m: f'v{D+m}'
        a(f'ds_write_b128 {vaddr}, v[{D}:{D+3}]')
        a(f'ds_write_b128 {vaddr}, v[{D+2}:{D+5}] offset:{4*CST}')
        for m in range(4):
            a(f'v_alignbit_b32 v{40+m}, {d(m+1)}, {d(m)}, 16')
            a(f'v_alignbit_b32 v{44+m}, {d(m+2)}, {d(m+1)}, 16')
            a(f'v_alignbit_b32 v{48+m}, {d(m+3)}, {d(m+2)}, 16')
            a(f'v_alignbit_b32 v{52+m}, {d(m+4)}, {d(m+3)}, 16')
            a(f'v_mov_b32 v{56+m}, {d(m+1)}')
            a(f'v_mov_b32 v{60+m}, {d(m+3)}')
        for c, r in ((1, 40), (3, 44), (5, 48), (7, 52), (2, 56), (6, 60)):
            a(f'ds_write_b128 {vaddr}, v[{r}:{r+3}] offset:{c*CST}')
    work = {0: [(k, 1) for k in range(0, 12)],
            1: [(k, 1) for k in range(12, 24)],
            2: [(k, 1) for k in range(24, 32)] + [(k, 0) for k in range(32, 40)],
            3: [(k, 0) for k in range(40, 64)]}
    PF = 3
    for c in range(nch):
        R = 100 + 24 * c
        for r in range(32): a(f'v_mov_b32 v{64+r}, 0')
        stamp(a, 6*c, 150, NG)
        a(f's_waitcnt vmcnt({6*(nch-1-c)})')
        stamp(a, 6*c+1, 150, NG)
        if c > 0:
            a('s_barrier')
        shifted(R, 'v1')
        a(f'ds_write_b128 v4, v[{R+16}:{R+19}] offset:{UB + 2560}')
        a('v_cmp_gt_u32 vcc, 8, v0')
        a('s_and_saveexec_b64 s[16:17], vcc')
        shifted(R + 8, 'v2')
        a('s_mov_b64 exec, s[16:17]')
        a(f'v_lshlrev_b32 v{R+20}, 16, v{R+20}')
        a('s_waitcnt lgkmcnt(0)')
        a('s_barrier')
        stamp(a, 6*c+2, 150, NG)
        for w in range(4):
            a.lab(f'C{c}_w{w}')
            if w < 3:
                a(f's_cmp_lg_u32 s18, {w}')
                a(f's_cbranch_scc1 C{c}_w{w+1}')
            seq = [(k, h, both) for (k, both) in work[w] for h in (0, 1)]
            def nread(idx): return 3 if seq[idx][2] else 2
            def rd(idx):
                k, h, both = seq[idx]
                st = 16 + 12 * (idx % 4)
                a(f'ds_read_b128 v[{st}:{st+3}], v8 offset:{64*(63-k)+32*h}')
                a(f'ds_read_b128 v[{st+4}:{st+7}], v9 offset:{80*(63-k)+32*h+2560}')
                if both: a(f'ds_read_b128 v[{st+8}:{st+11}], v9 offset:{80*(63-k)+32*h}')
            for i in range(min(PF, len(seq))): rd(i)
            for idx in range(len(seq)):
                k, h, both = seq[idx]
                st = 16 + 12 * (idx % 4)
                later = sum(nread(j) for j in range(idx + 1, min(idx + PF, len(seq))))
                a(f's_waitcnt lgkmcnt({later})')
                a(f'v_mfma_f32_32x32x16_bf16 v[80:95], v[{st}:{st+3}], v[{st+4}:{st+7}], v[80:95]')
                if both: a(f'v_mfma_f32_32x32x16_bf16 v[64:79], v[{st}:{st+3}], v[{st+8}:{st+11}], v[64:79]')
                if idx + PF < len(seq): rd(idx + PF)
            if w < 3: a(f's_branch C{c}_red')
        a.lab(f'C{c}_red')
        a('s_nop 15')
        stamp(a, 6*c+3, 150, NG)
        a('s_barrier')
        stamp(a, 6*c+4, 150, NG)
        a('s_cmp_eq_u32 s18, 3')
        a(f's_cbranch_scc1 C{c}_skip0')
        for r4 in range(4):
            a(f'ds_write_b128 v96, v[{64+4*r4}:{67+4*r4}] offset:{1024*r4}')
        a.lab(f'C{c}_skip0')
        for r4 in range(4):
            a(f'ds_write_b128 v96, v[{80+4*r4}:{83+4*r4}] offset:{4096+1024*r4}')
        a('s_waitcnt lgkmcnt(0)')
        a('s_barrier')
        for src in range(3):
            for q in range(2):
                a(f'ds_read_b128 v[{16+8*src+4*q}:{19+8*src+4*q}], v97 offset:{8192*src+1024*q}')
        for q in range(2):
            a(f'ds_read_b128 v[{40+4*q}:{43+4*q}], v98 offset:{1024*q}')
        for q in range(2):
            a(f'ds_read_b64 v[{48+2*q}:{49+2*q}], v15 offset:{UB + 2560 + 16*q}')
        a(f's_add_u32 s20, s7, {4096*c}')
        a('s_waitcnt lgkmcnt(0)')
        stamp(a, 6*c+5, 150, NG)
        for r in range(8):
            a(f'v_add_f32 v{16+r}, v{16+r}, v{24+r}')
            a(f'v_add_f32 v{32+r}, v{32+r}, v{40+r}')
            a(f'v_add_f32 v{16+r}, v{16+r}, v{32+r}')
        for q in range(2):
            for p in range(2):
                u = 48 + 2 * q + p
                y0, y1 = 16 + 4 * q + 2 * p, 17 + 4 * q + 2 * p
                a(f'v_lshlrev_b32 v40, 16, v{u}')
                a(f'v_and_b32 v41, 0xffff0000, v{u}')
                a(f'v_mul_f32 v40, v40, v{R+20}')
                a(f'v_mul_f32 v41, v41, v{R+20}')
                a('v_cvt_pk_bf16_f32 v42, v40, v41')
                a('v_lshlrev_b32 v40, 16, v42')
                a('v_and_b32 v41, 0xffff0000, v42')
                a(f'v_cvt_pk_bf16_f32 v42, v{y0}, v{y1}')
                a('v_lshlrev_b32 v43, 16, v42')
                a('v_and_b32 v44, 0xffff0000, v42')
                a('v_add_f32 v40, v40, v43')
                a('v_add_f32 v41, v41, v44')
                a(f'v_cvt_pk_bf16_f32 v{52+2*q+p}, v40, v41')
            a(f'buffer_store_dwordx2 v[{52+2*q}:{53+2*q}], v14, s[8:11], s20 offen offset:{16*q}')
    trace_end(a)
    a('s_endpgm')

def gemm1_body(a, wg_sreg):
    srd(a, 12, 52, 512 * 1792 * 2)
    srd(a, 16, 54, 1792 * 2)
    a(f's_and_b32 s4, {wg_sreg}, 7')
    a('s_lshl_b32 s4, s4, 1')
    a(f's_bfe_u32 s5, {wg_sreg}, 0x10003')
    a('s_add_u32 s4, s4, s5')
    a(f's_lshr_b32 s5, {wg_sreg}, 4')
    a('v_lshrrev_b32 v1, 3, v0')
    a('v_and_b32 v2, 7, v0')
    a('s_lshl_b32 s6, s4, 17')
    a('v_lshlrev_b32 v3, 10, v1')
    a('v_lshl_add_u32 v3, v2, 4, v3')
    a('v_add_u32 v3, s6, v3')
    a('v_mul_u32_u24 v4, 144, v1')
    a('v_lshl_add_u32 v4, v2, 4, v4')
    a('v_lshrrev_b32 v1, 4, v0')
    a('v_and_b32 v2, 15, v0')
    a('v_mul_u32_u24 v5, 3584, v1')
    a('v_lshl_add_u32 v5, v2, 4, v5')
    a('s_lshl_b32 s7, s5, 8')
    a('v_add_u32 v5, s7, v5')
    a('v_mul_u32_u24 v6, 320, v1')
    a('v_lshl_add_u32 v6, v2, 4, v6')
    a(f'v_add_u32 v6, {ASZ}, v6')
    for q in range(1, 4):
        a(f'v_add_u32 v{8+q}, {32768*q}, v3')
        a(f'v_add_u32 v{11+q}, {16*3584*q}, v5')
    SETS = (96, 128, 160)
    def gload(kt):
        st = SETS[kt % 3]
        a(f's_mov_b32 s20, {kt*128}')
        a(f's_mov_b32 s21, {kt*64*3584}')
        for q in range(4):
            va = 'v3' if q == 0 else f'v{8+q}'
            a(f'buffer_load_dwordx4 v[{st+4*q}:{st+3+4*q}], {va}, s[8:11], s20 offen')
        for q in range(4):
            vb = 'v5' if q == 0 else f'v{11+q}'
            a(f'buffer_load_dwordx4 v[{st+16+4*q}:{st+19+4*q}], {vb}, s[12:15], s21 offen')
    stamp(a, 0, 54)
    gload(0); gload(1); gload(2)
    a('v_lshrrev_b32 v1, 6, v0')
    a('v_lshrrev_b32 v7, 1, v1')
    a('v_and_b32 v8, 1, v1')
    a('v_and_b32 v15, 31, v0')
    a('v_bfe_u32 v48, v0, 5, 1')
    a('v_lshl_add_u32 v49, v7, 6, v15')
    a('v_mul_u32_u24 v49, 144, v49')
    a('v_lshl_add_u32 v49, v48, 4, v49')
    a('v_bfe_u32 v50, v0, 2, 2')
    a('v_lshl_add_u32 v50, v48, 3, v50')
    a('v_mul_u32_u24 v50, 320, v50')
    a('v_bfe_u32 v51, v0, 4, 1')
    a('v_lshlrev_b32 v51, 5, v51')
    a('v_lshl_add_u32 v51, v8, 7, v51')
    a('v_and_b32 v52, 3, v0')
    a('v_lshl_add_u32 v51, v52, 3, v51')
    a('v_add_u32 v50, v50, v51')
    a(f'v_add_u32 v50, {ASZ}, v50')
    a('v_lshlrev_b32 v53, 7, v8')
    a('v_lshl_add_u32 v53, v48, 3, v53')
    a('v_add_u32 v53, s7, v53')
    for nt in range(2):
        for rq in range(4):
            a(f'buffer_load_dwordx2 v[{56+8*nt+2*rq}:{57+8*nt+2*rq}], v53, s[16:19], 0 offen offset:{64*nt+16*rq}')
    for r in range(64): a(f'v_mov_b32 v{192+r}, 0')
    def lwrite(kt):
        st = SETS[kt % 3]; buf = kt & 1
        for q in range(4):
            a(f'ds_write_b128 v4, v[{st+4*q}:{st+3+4*q}] offset:{buf*STG + 32*144*q}')
        for q in range(4):
            a(f'ds_write_b128 v6, v[{st+16+4*q}:{st+19+4*q}] offset:{buf*STG + 16*320*q}')
    def frd(buf, kk, fs):
        fa = 16 + 16 * fs
        for mt in range(2):
            a(f'ds_read_b128 v[{fa+4*mt}:{fa+3+4*mt}], v49 offset:{buf*STG + mt*32*144 + kk*32}')
        for nt in range(2):
            for u in range(2):
                a(f'ds_read_b64_tr_b16 v[{fa+8+4*nt+2*u}:{fa+9+4*nt+2*u}], v50 offset:{buf*STG + (kk*16+4*u)*320 + nt*64}')
    def fmma(fs):
        fa = 16 + 16 * fs
        for mt in range(2):
            for nt in range(2):
                acc = 192 + 16 * (2 * mt + nt)
                a(f'v_mfma_f32_32x32x16_bf16 v[{acc}:{acc+15}], v[{fa+8+4*nt}:{fa+11+4*nt}], v[{fa+4*mt}:{fa+3+4*mt}], v[{acc}:{acc+15}]')
    a('s_waitcnt vmcnt(24)')
    stamp(a, 1, 54)
    lwrite(0)
    a('s_waitcnt lgkmcnt(0)')
    a('s_barrier')
    for kt in range(8):
        buf = kt & 1
        stamp(a, 2 + kt, 54)
        frd(buf, 0, 0)
        if kt < 7:
            newer = (8 if kt + 2 < 8 else 0) + (8 if kt == 0 else 0)
            a(f's_waitcnt vmcnt({newer})')
            lwrite(kt + 1)
            if kt + 3 < 8: gload(kt + 3)
        nl = 8 if kt < 7 else 0
        for kk in range(4):
            if kk < 3:
                frd(buf, kk + 1, (kk + 1) & 1)
                a('s_waitcnt lgkmcnt(6)')
            else:
                a('s_waitcnt lgkmcnt(0)')
            fmma(kk & 1)
        if kt < 7:
            a('s_barrier')
    stamp(a, 10, 54)
    a(f'v_mov_b32 v16, {f32hex(GC1)}')
    a(f'v_mov_b32 v17, {f32hex(GC1)}')
    a(f's_mov_b32 s22, {f32hex(GC2)}')
    a(f's_mov_b32 s23, {f32hex(GC2)}')
    a('v_mov_b32 v18, 1.0')
    a('v_mov_b32 v19, 1.0')
    a('v_lshl_add_u32 v20, v7, 6, v15')
    a('s_lshl_b32 s6, s4, 7')
    a('v_add_u32 v20, s6, v20')
    a('v_mul_u32_u24 v20, 3584, v20')
    a('v_add_u32 v20, v20, v53')
    a(f'v_add_u32 v20, {WS_H}, v20')
    a(f'v_add_u32 v21, {32*3584}, v20')
    a('s_waitcnt vmcnt(0)')
    for i in range(16):
        a(f'v_lshlrev_b32 v{96+2*i}, 16, v{56+i}')
        a(f'v_and_b32 v{97+2*i}, 0xffff0000, v{56+i}')
    a('s_nop 7')
    for mt in range(2):
        for nt in range(2):
            acc = 192 + 16 * (2 * mt + nt)
            for rq in range(4):
                regs = []
                for p in range(2):
                    b = 96 + 16 * nt + 4 * rq + 2 * p
                    y0 = acc + 4 * rq + 2 * p
                    P = 24 + 4 * p; Q = 26 + 4 * p; T = 32 + p
                    regs.append((b, y0, P, Q, T))
                for (b, y0, P, Q, T) in regs:
                    a(f'v_cvt_pk_bf16_f32 v{T}, v{y0}, v{y0+1}')
                for (b, y0, P, Q, T) in regs:
                    a(f'v_lshlrev_b32 v{P}, 16, v{T}')
                    a(f'v_and_b32 v{P+1}, 0xffff0000, v{T}')
                for (b, y0, P, Q, T) in regs:
                    a(f'v_pk_add_f32 v[{P}:{P+1}], v[{P}:{P+1}], v[{b}:{b+1}]')
                for (b, y0, P, Q, T) in regs:
                    a(f'v_cvt_pk_bf16_f32 v{T}, v{P}, v{P+1}')
                for (b, y0, P, Q, T) in regs:
                    a(f'v_lshlrev_b32 v{P}, 16, v{T}')
                    a(f'v_and_b32 v{P+1}, 0xffff0000, v{T}')
                for (b, y0, P, Q, T) in regs:
                    a(f'v_pk_mul_f32 v[{Q}:{Q+1}], v[{P}:{P+1}], v[{P}:{P+1}]')
                for (b, y0, P, Q, T) in regs:
                    a(f'v_pk_fma_f32 v[{Q}:{Q+1}], v[{Q}:{Q+1}], s[22:23], v[16:17]')
                for (b, y0, P, Q, T) in regs:
                    a(f'v_pk_mul_f32 v[{Q}:{Q+1}], v[{Q}:{Q+1}], v[{P}:{P+1}]')
                for (b, y0, P, Q, T) in regs:
                    a(f'v_exp_f32 v{Q}, v{Q}')
                    a(f'v_exp_f32 v{Q+1}, v{Q+1}')
                for (b, y0, P, Q, T) in regs:
                    a(f'v_pk_add_f32 v[{Q}:{Q+1}], v[{Q}:{Q+1}], v[18:19]')
                for (b, y0, P, Q, T) in regs:
                    a(f'v_rcp_f32 v{Q}, v{Q}')
                    a(f'v_rcp_f32 v{Q+1}, v{Q+1}')
                for (b, y0, P, Q, T) in regs:
                    a(f'v_pk_mul_f32 v[{P}:{P+1}], v[{P}:{P+1}], v[{Q}:{Q+1}]')
                for p, (b, y0, P, Q, T) in enumerate(regs):
                    a(f'v_cvt_pk_bf16_f32 v{34 + 2*(rq&1) + p}, v{P}, v{P+1}')
                dst = 'v20' if mt == 0 else 'v21'
                o = 34 + 2 * (rq & 1)
                a(f'buffer_store_dwordx2 v[{o}:{o+1}], {dst}, s[8:11], 0 offen offset:{64*nt+16*rq}')

def gen_mid2():
    a = A()
    a(f's_cmp_ge_u32 s2, {NG + 256}')
    a('s_cbranch_scc1 M_end')
    a('s_load_dwordx16 s[36:51], s[0:1], 0')
    a('s_load_dwordx8 s[52:59], s[0:1], 64')
    a('s_load_dwordx2 s[60:61], s[0:1], 112')
    a('s_load_dwordx2 s[62:63], s[0:1], 104')
    a('s_waitcnt lgkmcnt(0)')
    srd(a, 8, 60, WS_SIZE)
    srd(a, 84, 62, 256)
    if os.environ.get('TRACE'):
        a('s_memrealtime s[96:97]')
        a('s_waitcnt lgkmcnt(0)')
    a(f's_cmp_ge_u32 s2, {NG}')
    a('s_cbranch_scc0 ' + ('M_end' if os.environ.get('SKIP') == 'gemm' else 'M_gemm'))
    if os.environ.get('SKIP') == 'conv': a('s_branch M_end')
    a(f's_sub_u32 s19, s2, {NG}')
    conv_body(a, 's19')
    a.lab('M_gemm')
    import gen10 as gen6
    gen6.gemm1_body(a, 's2')
    a('s_waitcnt vmcnt(0)')
    stamp(a, 11, 54, gen6.GW)
    trace_end(a)
    a.lab('M_end')
    a('s_endpgm')
    return a.text(), max(CONV_LDS, gen6.GEMM_LDS)

if __name__ == '__main__':
    import sys
    from gen import build
    from gen4 import gen_prep2
    import gen7, gen9, gen4
    t, l = gen_prep2()
    m, ml = gen_mid2()
    fa = A()
    fa('s_cmp_ge_u32 s2, 256')
    fa('s_cbranch_scc1 F_end')
    fa('s_load_dwordx2 s[36:37], s[0:1], 0')
    fa('s_load_dwordx8 s[52:59], s[0:1], 64')
    fa('s_load_dwordx4 s[60:63], s[0:1], 96')
    fa('s_load_dwordx2 s[64:65], s[0:1], 112')
    gen9.fin4_body(fa)
    fa.lab('F_end')
    fa('s_endpgm')
    ks = [('prep_kernel', 576 + gen4.N_PACK, l, t, 128), ('mid_kernel', NG + 256, ml, m, 256),
          ('fin_kernel', 256, gen9.FIN_LDS, fa.text(), 256)]
    open(sys.argv[1] if len(sys.argv) > 1 else 'k.s', 'w').write(build(ks))
```

```python
from gen import A, srd, f32hex, WS_XN, WS_H, WS_SIZE, WS_W1F, LOG2E
from gen3 import stamp
import os
GC1 = -2 * 0.7978845608028654 * LOG2E
GC2 = GC1 * 0.044715
GW = 0 if os.environ.get('STAMP') != 'conv' else 99999
STG = 16384
NSL = 5
GEMM_LDS = NSL * STG

class VM:
    def __init__(s, a): s.a = a; s.l = []
    def issue(s, tag, ins): s.a(ins); s.l.append(tag)
    def wait(s, tag):
        idx = max(i for i, t in enumerate(s.l) if t == tag)
        s.a(f's_waitcnt vmcnt({len(s.l) - 1 - idx})')

def gelu_epilogue(a, ACC, BIASF, OB, sbase):
    a(f'v_mov_b32 v16, {f32hex(GC1)}')
    a(f'v_mov_b32 v17, {f32hex(GC1)}')
    a(f's_mov_b32 s22, {f32hex(GC2)}')
    a(f's_mov_b32 s23, {f32hex(GC2)}')
    a('v_mov_b32 v18, 1.0')
    a('v_mov_b32 v19, 1.0')
    for mt in range(2):
        for nt in range(2):
            acc = ACC + 16 * (2 * mt + nt)
            for rq in range(4):
                regs = []
                for p in range(2):
                    b = BIASF + 16 * nt + 4 * rq + 2 * p
                    y0 = acc + 4 * rq + 2 * p
                    P = 24 + 4 * p; Q = 26 + 4 * p; T = 32 + p
                    regs.append((b, y0, P, Q, T))
                for (b, y0, P, Q, T) in regs:
                    a(f'v_cvt_pk_bf16_f32 v{T}, v{y0}, v{y0+1}')
                for (b, y0, P, Q, T) in regs:
                    a(f'v_lshlrev_b32 v{P}, 16, v{T}')
                    a(f'v_and_b32 v{P+1}, 0xffff0000, v{T}')
                for (b, y0, P, Q, T) in regs:
                    a(f'v_pk_add_f32 v[{P}:{P+1}], v[{P}:{P+1}], v[{b}:{b+1}]')
                for (b, y0, P, Q, T) in regs:
                    a(f'v_cvt_pk_bf16_f32 v{T}, v{P}, v{P+1}')
                for (b, y0, P, Q, T) in regs:
                    a(f'v_lshlrev_b32 v{P}, 16, v{T}')
                    a(f'v_and_b32 v{P+1}, 0xffff0000, v{T}')
                for (b, y0, P, Q, T) in regs:
                    a(f'v_pk_mul_f32 v[{Q}:{Q+1}], v[{P}:{P+1}], v[{P}:{P+1}]')
                for (b, y0, P, Q, T) in regs:
                    a(f'v_pk_fma_f32 v[{Q}:{Q+1}], v[{Q}:{Q+1}], s[22:23], v[16:17]')
                for (b, y0, P, Q, T) in regs:
                    a(f'v_pk_mul_f32 v[{Q}:{Q+1}], v[{Q}:{Q+1}], v[{P}:{P+1}]')
                for (b, y0, P, Q, T) in regs:
                    a(f'v_exp_f32 v{Q}, v{Q}')
                    a(f'v_exp_f32 v{Q+1}, v{Q+1}')
                for (b, y0, P, Q, T) in regs:
                    a(f'v_pk_add_f32 v[{Q}:{Q+1}], v[{Q}:{Q+1}], v[18:19]')
                for (b, y0, P, Q, T) in regs:
                    a(f'v_rcp_f32 v{Q}, v{Q}')
                    a(f'v_rcp_f32 v{Q+1}, v{Q+1}')
                for (b, y0, P, Q, T) in regs:
                    a(f'v_pk_mul_f32 v[{P}:{P+1}], v[{P}:{P+1}], v[{Q}:{Q+1}]')
                ob = OB + 4 * ((2 * nt + (rq >> 1)) & 3) + 16 * mt
                o = ob + 2 * (rq & 1)
                for p, (b, y0, P, Q, T) in enumerate(regs):
                    a(f'v_cvt_pk_bf16_f32 v{o + p}, v{P}, v{P+1}')
                if rq & 1:
                    a('s_nop 1')
                    a(f'v_permlane32_swap_b32 v{ob}, v{ob+2}')
                    a(f'v_permlane32_swap_b32 v{ob+1}, v{ob+3}')
                    a(f'buffer_store_dwordx4 v[{ob}:{ob+3}], v20, s[8:11], s{sbase+mt} offen offset:{1024*(2*nt+(rq>>1))}')

def gemm1_body(a, wg_sreg):
    srd(a, 16, 54, 1792 * 2)
    a(f's_and_b32 s4, {wg_sreg}, 7')
    a('s_lshl_b32 s4, s4, 1')
    a(f's_bfe_u32 s5, {wg_sreg}, 0x10003')
    a('s_add_u32 s4, s4, s5')
    a(f's_lshr_b32 s5, {wg_sreg}, 4')
    a('v_lshrrev_b32 v1, 6, v0')
    a('v_and_b32 v2, 63, v0')
    a('v_lshlrev_b32 v3, 4, v2')
    a('v_readfirstlane_b32 s28, v1')
    a('s_lshl_b32 s6, s4, 2')
    a('s_add_u32 s6, s6, s28')
    a('s_lshl_b32 s6, s6, 15')
    a(f's_add_u32 s40, s6, {WS_XN}')
    a('s_lshl_b32 s6, s5, 2')
    a('s_add_u32 s6, s6, s28')
    a('s_lshl_b32 s6, s6, 15')
    a(f's_add_u32 s41, s6, {WS_W1F}')
    a('s_lshl_b32 s29, s28, 11')
    vm = VM(a)
    def dma(kt):
        sb = (kt % NSL) * STG
        L = []
        L.append((None, f's_add_u32 m0, s29, {sb}'))
        L.append((None, 's_nop 0'))
        L.append((kt, 'buffer_load_dwordx4 v3, s[8:11], s40 offen lds'))
        L.append((kt, 'buffer_load_dwordx4 v3, s[8:11], s40 offen offset:1024 lds'))
        L.append((None, f's_add_u32 m0, s29, {sb + 8192}'))
        L.append((None, 's_add_u32 s40, s40, 2048'))
        L.append((kt, 'buffer_load_dwordx4 v3, s[8:11], s41 offen lds'))
        L.append((kt, 'buffer_load_dwordx4 v3, s[8:11], s41 offen offset:1024 lds'))
        L.append((None, 's_add_u32 s41, s41, 2048'))
        return L
    def emit(L):
        for tag, ins in L:
            if tag is None: a(ins)
            else: vm.issue(tag, ins)
    stamp(a, 0, 54, GW)
    D = NSL - 1
    for kt in range(D): emit(dma(kt))
    a('v_lshrrev_b32 v7, 1, v1')
    a('v_and_b32 v8, 1, v1')
    a('v_and_b32 v15, 31, v0')
    a('v_bfe_u32 v9, v0, 5, 1')
    a('s_lshl_b32 s7, s5, 8')
    a('v_lshlrev_b32 v10, 7, v8')
    a('v_lshl_add_u32 v10, v9, 3, v10')
    a('v_add_u32 v10, s7, v10')
    for nt in range(2):
        for rq in range(4):
            vm.issue('bias', f'buffer_load_dwordx2 v[{48+8*nt+2*rq}:{49+8*nt+2*rq}], v10, s[16:19], 0 offen offset:{64*nt+16*rq}')
    a('v_lshl_add_u32 v11, v7, 12, v3')
    a('v_lshl_add_u32 v12, v8, 12, v3')
    a('v_add_u32 v12, 8192, v12')
    a('v_add_u32 v13, 49152, v11')
    a('v_add_u32 v14, 49152, v12')
    ACC = 96
    for r in range(64): a(f'v_mov_b32 v{ACC+r}, 0')
    def frd(kt, kk, fs):
        fa = 16 + 16 * fs; sb = (kt % NSL) * STG
        va, vb = 'v11', 'v12'
        if sb >= 49152: sb -= 49152; va, vb = 'v13', 'v14'
        L = []
        for mt in range(2):
            L.append(f'ds_read_b128 v[{fa+4*mt}:{fa+3+4*mt}], {va} offset:{sb + mt*2048 + kk*1024}')
        for nt in range(2):
            L.append(f'ds_read_b128 v[{fa+8+4*nt}:{fa+11+4*nt}], {vb} offset:{sb + nt*2048 + kk*1024}')
        return L
    def mm(fs, j):
        fa = 16 + 16 * fs
        mt, nt = j >> 1, j & 1
        acc = ACC + 16 * (2 * mt + nt)
        return f'v_mfma_f32_32x32x16_bf16 v[{acc}:{acc+15}], v[{fa+8+4*nt}:{fa+11+4*nt}], v[{fa+4*mt}:{fa+3+4*mt}], v[{acc}:{acc+15}]'
    vm.wait(0)
    stamp(a, 1, 54, GW)
    a('s_barrier')
    for x in frd(0, 0, 0): a(x)
    NT = 16
    for kt in range(NT):
        if kt % 2 == 0: stamp(a, 2 + kt // 2, 54, GW)
        F1 = frd(kt, 1, 1)
        F0 = frd(kt + 1, 0, 0) if kt + 1 < NT else []
        a('s_waitcnt lgkmcnt(0)')
        a(mm(0, 0))
        for x in F1[:2]: a(x)
        a(mm(0, 1))
        for x in F1[2:]: a(x)
        a(mm(0, 2))
        if kt + 1 < NT:
            vm.wait(kt + 1)
            a('s_barrier')
        G = dma(kt + D) if kt + D < NT else []
        emit(G[:4])
        a(mm(0, 3))
        emit(G[4:])
        a('s_waitcnt lgkmcnt(0)')
        a(mm(1, 0))
        for x in F0[:2]: a(x)
        a(mm(1, 1))
        for x in F0[2:]: a(x)
        a(mm(1, 2))
        a(mm(1, 3))
    stamp(a, 10, 54, GW)
    a('v_and_b32 v20, 63, v0')
    a('v_lshlrev_b32 v20, 4, v20')
    a('s_lshl_b32 s26, s4, 2')
    a('s_and_b32 s24, s28, 2')
    a('s_add_u32 s26, s26, s24')
    a('s_mul_i32 s26, s26, 112')
    a('s_lshl_b32 s27, s5, 3')
    a('s_add_u32 s26, s26, s27')
    a('s_and_b32 s25, s28, 1')
    a('s_lshl_b32 s25, s25, 2')
    a('s_add_u32 s26, s26, s25')
    a('s_lshl_b32 s26, s26, 10')
    a(f's_add_u32 s26, s26, {WS_H}')
    a(f's_add_u32 s27, s26, {112*1024}')
    a('s_waitcnt vmcnt(0)')
    for i in range(16):
        a(f'v_lshlrev_b32 v{64+2*i}, 16, v{48+i}')
        a(f'v_and_b32 v{65+2*i}, 0xffff0000, v{48+i}')
    gelu_epilogue(a, ACC, 64, 160, 26)
```

```python
from gen import A, srd, f32hex, bf16r, exp_acc, L2E_HI, L2E_LO, LN2, LOG2E
from gen3 import stamp
from gen import WS_XN, WS_XNT, WS_AT, WS_KR, WS_H, WS_SIZE, WS_W1F, WS_W2F
N_PACK = 112
KRS = 4352
GC1 = -2 * 0.7978845608028654 * LOG2E
GC2 = GC1 * 0.044715

def gen_prep2():
    a = A()
    N_LN = 64
    a(f's_cmp_ge_u32 s2, {N_LN + 512 + N_PACK}')
    a('s_cbranch_scc1 P_end')
    a('s_load_dwordx16 s[36:51], s[0:1], 0')
    a('s_load_dwordx2 s[52:53], s[0:1], 112')
    a('s_waitcnt lgkmcnt(0)')
    return prep_body(a)

import os
def ptr(a):
    if not os.environ.get('PTRACE'): return
    a('s_waitcnt vmcnt(0)')
    a('s_memrealtime s[98:99]')
    a('s_waitcnt lgkmcnt(0)')
    a('v_mov_b32 v40, s96')
    a('v_mov_b32 v41, s98')
    a('s_lshl_b32 s20, s2, 3')
    a(f's_add_u32 s20, s20, {23<<20}')
    a('v_mov_b32 v42, s20')
    a('v_cmp_eq_u32 vcc, 0, v0')
    a('s_and_saveexec_b64 s[16:17], vcc')
    a('buffer_store_dwordx2 v[40:41], v42, s[8:11], 0 offen')
    a('s_mov_b64 exec, s[16:17]')

def prep_body(a):
    if os.environ.get('PTRACE'):
        a('s_memrealtime s[96:97]')
        a('s_waitcnt lgkmcnt(0)')
    N_LN = 64
    RSB = 528; MSZ = 16 * RSB; SLOT = 4 * MSZ
    srd(a, 8, 52, WS_SIZE)
    a('s_add_u32 s3, s2, 64')
    a('s_sub_u32 s4, s2, 512')
    a('s_cmp_lt_u32 s2, 512')
    a('s_cselect_b32 s3, s3, s4')
    a('s_cmp_lt_u32 s2, 576')
    a('s_cselect_b32 s2, s3, s2')
    a(f's_cmp_ge_u32 s2, {N_LN}')
    a('s_cbranch_scc1 P_kgen')
    srd(a, 4, 36, 2048 * 512 * 2)
    a('v_lshrrev_b32 v1, 3, v0')
    a('v_and_b32 v2, 7, v0')
    a('s_lshl_b32 s12, s2, 15')
    a('v_lshlrev_b32 v3, 10, v1')
    a('v_lshl_add_u32 v3, v2, 4, v3')
    a('v_add_u32 v3, s12, v3')
    for q in range(8):
        a(f'buffer_load_dwordx4 v[{16+4*q}:{19+4*q}], v3, s[4:7], 0 offen offset:{128*q}')
    a('s_waitcnt vmcnt(0)')
    for i in range(32):
        a(f'v_lshlrev_b32 v{64+2*i}, 16, v{16+i}')
        a(f'v_and_b32 v{65+2*i}, 0xffff0000, v{16+i}')
    a('v_add_f32 v4, v64, v65')
    a('v_add_f32 v5, v66, v67')
    for i in range(4, 64, 4):
        a(f'v_add_f32 v6, v{64+i}, v{65+i}')
        a(f'v_add_f32 v7, v{66+i}, v{67+i}')
        a('v_add_f32 v4, v4, v6')
        a('v_add_f32 v5, v5, v7')
    a('v_add_f32 v4, v4, v5')
    def red8(reg):
        for off in (0x041F, 0x081F, 0x101F):
            a(f'ds_swizzle_b32 v5, {reg} offset:{off}')
            a('s_waitcnt lgkmcnt(0)')
            a(f'v_add_f32 {reg}, {reg}, v5')
    red8('v4')
    a(f'v_mul_f32 v4, {f32hex(1/512)}, v4')
    a('v_sub_f32 v5, v64, v4')
    a('v_sub_f32 v7, v65, v4')
    a('v_mul_f32 v6, v5, v5')
    a('v_mul_f32 v8, v7, v7')
    for i in range(2, 64, 2):
        a(f'v_sub_f32 v5, v{64+i}, v4')
        a(f'v_sub_f32 v7, v{65+i}, v4')
        a('v_fmac_f32 v6, v5, v5')
        a('v_fmac_f32 v8, v7, v7')
    a('v_add_f32 v6, v6, v8')
    red8('v6')
    a(f'v_mul_f32 v6, {f32hex(1/512)}, v6')
    bf16r(a, 'v4', 'v4')
    bf16r(a, 'v6', 'v6')
    a(f'v_add_f32 v6, {f32hex(1e-5)}, v6')
    bf16r(a, 'v6', 'v6')
    a('v_sqrt_f32 v6, v6')
    a('s_nop 1')
    bf16r(a, 'v6', 'v6')
    a('v_rcp_f32 v7, v6')
    a('s_nop 1')
    for i in range(32):
        x0, x1 = f'v{64+2*i}', f'v{65+2*i}'
        a(f'v_sub_f32 {x0}, {x0}, v4')
        a(f'v_sub_f32 {x1}, {x1}, v4')
        a(f'v_cvt_pk_bf16_f32 v8, {x0}, {x1}')
        a(f'v_lshlrev_b32 {x0}, 16, v8')
        a(f'v_and_b32 {x1}, 0xffff0000, v8')
        a(f'v_mul_f32 v8, {x0}, v7')
        a(f'v_mul_f32 v9, {x1}, v7')
        a(f'v_fma_f32 {x0}, -v8, v6, {x0}')
        a(f'v_fma_f32 {x1}, -v9, v6, {x1}')
        a(f'v_fma_f32 v8, {x0}, v7, v8')
        a(f'v_fma_f32 v9, {x1}, v7, v9')
        a(f'v_cvt_pk_bf16_f32 v{16+i}, v8, v9')
    a('v_lshrrev_b32 v12, 1, v2')
    a('v_lshlrev_b32 v12, 10, v12')
    a('v_and_b32 v13, 1, v2')
    a('v_lshl_add_u32 v12, v13, 9, v12')
    a('v_lshl_add_u32 v12, v1, 4, v12')
    a('v_add_u32 v12, s12, v12')
    for q in range(8):
        a(f's_mov_b32 s20, {WS_XN + 4096*q}')
        a(f'buffer_store_dwordx4 v[{16+4*q}:{19+4*q}], v12, s[8:11], s20 offen')
    a('v_mul_u32_u24 v10, 1040, v1')
    a('v_lshl_add_u32 v10, v2, 4, v10')
    for q in range(8):
        a(f'ds_write_b128 v10, v[{16+4*q}:{19+4*q}] offset:{128*q}')
    a('s_waitcnt lgkmcnt(0)')
    a('s_barrier')
    a('v_lshlrev_b32 v10, 2, v0')
    for r in range(32):
        a(f'ds_read_b32 v{64+r}, v10 offset:{1040*r}')
    a('s_mov_b32 s14, 0x05040100')
    a('s_mov_b32 s15, 0x07060302')
    a('s_waitcnt lgkmcnt(0)')
    for k in range(16):
        a(f'v_perm_b32 v{16+k}, v{65+2*k}, v{64+2*k}, s14')
        a(f'v_perm_b32 v{32+k}, v{65+2*k}, v{64+2*k}, s15')
    a('s_lshl_b32 s12, s2, 6')
    a(f's_add_u32 s12, s12, {WS_XNT}')
    a('v_lshlrev_b32 v10, 13, v0')
    a('v_add_u32 v10, s12, v10')
    a('v_add_u32 v11, 4096, v10')
    for q in range(4):
        a(f'buffer_store_dwordx4 v[{16+4*q}:{19+4*q}], v10, s[8:11], 0 offen offset:{16*q}')
        a(f'buffer_store_dwordx4 v[{32+4*q}:{35+4*q}], v11, s[8:11], 0 offen offset:{16*q}')
    ptr(a)
    a('s_endpgm')
    RSB = 528; MSZ = 16 * RSB; SLOT = 4 * MSZ
    KD = 2 * SLOT
    a.lab('P_kgen')
    a(f's_cmp_ge_u32 s2, {N_LN + 512}')
    a('s_cbranch_scc1 P_pack')
    a(f's_sub_u32 s3, s2, {N_LN}')
    srd(a, 12, 38, 512 * 128 * 2)
    srd(a, 16, 40, 512 * 128 * 2)
    srd(a, 20, 42, 512 * 128 * 2)
    srd(a, 24, 44, 512 * 128 * 2)
    srd(a, 28, 46, 512 * 2)
    a('v_and_b32 v1, 127, v0')
    a('v_lshrrev_b32 v2, 7, v0')
    a('s_lshl_b32 s4, s3, 8')
    a('v_lshl_add_u32 v3, v1, 1, s4')
    a('s_lshl_b32 s5, s3, 1')
    a('v_mov_b32 v4, s5')
    a('buffer_load_ushort v5, v3, s[12:15], 0 offen')
    a('buffer_load_ushort v6, v3, s[16:19], 0 offen')
    a('buffer_load_ushort v7, v3, s[20:23], 0 offen')
    a('buffer_load_ushort v8, v3, s[24:27], 0 offen')
    a('buffer_load_ushort v9, v4, s[28:31], 0 offen')
    a(f's_mov_b32 s32, {f32hex(L2E_HI)}')
    a(f's_mov_b32 s33, {f32hex(L2E_LO)}')
    a(f's_mov_b32 s34, {f32hex(LN2)}')
    a(f's_mov_b32 s35, {f32hex(1/(2*3.141592653589793))}')
    a('s_waitcnt vmcnt(0)')
    for r in (5, 6, 7, 8, 9):
        a(f'v_lshlrev_b32 v{r}, 16, v{r}')
    exp_acc(a, 'v10', 'v9', 'v11', 'v12', 's32', 's33', 's34')
    bf16r(a, 'v10', 'v10')
    exp_acc(a, 'v13', 'v5', 'v11', 'v12', 's32', 's33', 's34')
    bf16r(a, 'v13', 'v13')
    a('v_mul_f32 v13, v13, v10')
    a('v_sub_f32 v13, 0, v13')
    a('v_mul_f32 v14, v6, v10')
    a('v_mul_f32 v15, v7, v10')
    a('v_mul_f32 v16, v8, v10')
    RP = 1040
    KD = 32 * RP
    a(f'v_mul_u32_u24 v17, {16*RP}, v2')
    a('v_lshl_add_u32 v17, v1, 3, v17')
    def cexp(dr, di, p, t0, t1):
        a(f'v_mul_f32 {t0}, v13, {p}')
        a(f'v_mul_f32 {t0}, s32, {t0}')
        a(f'v_exp_f32 {t0}, {t0}')
        a(f'v_mul_f32 {t1}, v14, {p}')
        a(f'v_mul_f32 {t1}, s35, {t1}')
        a(f'v_fract_f32 {t1}, {t1}')
        a(f'v_cos_f32 {dr}, {t1}')
        a(f'v_sin_f32 {di}, {t1}')
        a('s_nop 1')
        a(f'v_mul_f32 {dr}, {dr}, {t0}')
        a(f'v_mul_f32 {di}, {di}, {t0}')
    def cmul(zr, zi, wr, wi, t0, t1):
        a(f'v_mul_f32 {t0}, {zi}, {wi}')
        a(f'v_mul_f32 {t1}, {zi}, {wr}')
        a(f'v_fma_f32 {t0}, {zr}, {wr}, -{t0}')
        a(f'v_fma_f32 {zi}, {zr}, {wi}, {t1}')
        a(f'v_mov_b32 {zr}, {t0}')
    def pcmul(z, w, t):
        a(f'v_pk_mul_f32 v[{t}:{t+1}], v[{z}:{z+1}], v[{w}:{w+1}] op_sel:[1,1] op_sel_hi:[1,0]')
        a(f'v_pk_fma_f32 v[{z}:{z+1}], v[{z}:{z+1}], v[{w}:{w+1}], v[{t}:{t+1}] op_sel:[0,0,0] op_sel_hi:[0,1,1] neg_lo:[0,0,1]')
    a('v_lshrrev_b32 v40, 6, v0')
    a('v_and_b32 v41, 63, v0')
    a('v_and_b32 v45, 15, v41')
    a(f'v_mul_u32_u24 v44, {RP}, v45')
    a('v_lshrrev_b32 v45, 4, v41')
    a('v_lshl_add_u32 v44, v45, 4, v44')
    a('v_lshl_add_u32 v44, v40, 8, v44')
    a('v_lshlrev_b32 v46, 8, v45')
    a('v_and_b32 v47, 15, v41')
    a('v_lshl_add_u32 v46, v47, 2, v46')
    a('v_lshl_add_u32 v46, v40, 12, v46')
    a(f'v_add_u32 v46, {KD}, v46')
    a('v_cmp_eq_u32 s[20:21], 0, v2')
    a('v_mov_b32 v18, 1.0')
    a('v_mov_b32 v19, 16.0')
    a('v_cndmask_b32 v18, v18, v19, s[20:21]')
    for sg in range(4):
        W = 96 + 4 * sg; Z = W + 2
        a(f'v_mul_f32 v22, {float(1 << sg)}, v18')
        cexp(f'v{W}', f'v{W+1}', 'v22', 'v30', 'v31')
        if sg == 0:
            a(f'v_mov_b32 v{Z}, v15')
            a(f'v_mov_b32 v{Z+1}, v16')
        else:
            a(f'v_mov_b32 v24, {f32hex(128.0 * (1 << sg))}')
            cexp(f'v{Z}', f'v{Z+1}', 'v24', 'v30', 'v31')
            cmul(f'v{Z}', f'v{Z+1}', 'v15', 'v16', 'v30', 'v31')
        a(f'v_sub_f32 v30, 0, v{W+1}')
        a(f'v_sub_f32 v31, 0, v{Z+1}')
        a(f'v_cndmask_b32 v{W+1}, v{W+1}, v30, s[20:21]')
        a(f'v_cndmask_b32 v{Z+1}, 0, v31, s[20:21]')
        a(f'v_cndmask_b32 v{Z}, 1.0, v{Z}, s[20:21]')
    for sg in range(4):
        W = 96 + 4 * sg; Z = W + 2
        if sg > 0:
            a('s_barrier')
        for i in range(16):
            a(f'ds_write_b64 v17, v[{Z}:{Z+1}] offset:{RP * i}')
            if i < 15: pcmul(Z, W, 36)
        a('s_waitcnt lgkmcnt(0)')
        a('s_barrier')
        for r in range(8): a(f'v_mov_b32 v{48+r}, 0')
        for t in range(4):
            a(f'ds_read_b128 v[{64+8*t}:{67+8*t}], v44 offset:{64*t}')
            a(f'ds_read_b128 v[{68+8*t}:{71+8*t}], v44 offset:{16*RP + 64*t}')
        for t in range(4):
            a(f's_waitcnt lgkmcnt({2*(3-t)})')
            for c in range(4):
                acc = 48 + 4 * (c & 1)
                a(f'v_mfma_f32_16x16x4_f32 v[{acc}:{acc+3}], v{64+8*t+c}, v{68+8*t+c}, v[{acc}:{acc+3}]')
        a('s_nop 15')
        for r in range(4): a(f'v_add_f32 v{48+r}, v{48+r}, v{52+r}')
        for r in range(4):
            a(f'ds_write_b32 v46, v{48+r} offset:{1024*sg + 64*r}')
    a('s_waitcnt lgkmcnt(0)')
    a('s_barrier')
    a('v_lshlrev_b32 v23, 3, v0')
    for e in range(9):
        a(f'v_sub_u32 v24, {2047 - e}, v23')
        a('v_cvt_f32_u32 v25, v24')
        a('v_bfe_u32 v26, v25, 16, 1')
        a('v_add_u32 v25, v25, v26')
        a('v_add_u32 v25, 0x7fff, v25')
        a('v_and_b32 v25, 0xffff0000, v25')
        a('v_lshrrev_b32 v26, 23, v25')
        a('v_cvt_u32_f32 v27, v25')
        a('v_subrev_u32 v26, 134, v26')
        a('v_max_i32 v26, 0, v26')
        a('v_min_i32 v26, 3, v26')
        a('v_lshrrev_b32 v27, v26, v27')
        a('v_cmp_eq_u32 vcc, 0, v26')
        a('v_subrev_u32 v28, 128, v27')
        a('s_nop 0')
        a('v_cndmask_b32 v27, v28, v27, vcc')
        a('v_and_b32 v27, 255, v27')
        a('v_lshl_add_u32 v27, v26, 8, v27')
        a('v_lshlrev_b32 v27, 2, v27')
        a(f'v_add_u32 v27, {KD}, v27')
        for qq in range(4):
            a(f'ds_read_b32 v{64+10*qq+e}, v27 offset:{4096*qq}')
    a('s_waitcnt lgkmcnt(0)')
    for e in range(9):
        a(f'v_add_f32 v{64+e}, v{64+e}, v{74+e}')
        a(f'v_add_f32 v{84+e}, v{84+e}, v{94+e}')
        a(f'v_add_f32 v{70+e+40}, v{64+e}, v{84+e}')
    for e in range(9):
        a(f'v_add_f32 v{70+e}, v{110+e}, v{110+e}')
    a('v_cmp_eq_u32 vcc, 255, v0')
    a('s_nop 1')
    a('v_cndmask_b32 v78, v78, 0, vcc')
    for e in range(4):
        a(f'v_cvt_pk_bf16_f32 v{56+e}, v{70+2*e}, v{71+2*e}')
    a(f's_mul_i32 s4, s3, {KRS}')
    a(f's_add_u32 s5, s4, {WS_KR}')
    a('v_lshl_add_u32 v23, v0, 4, s5')
    a('buffer_store_dwordx4 v[56:59], v23, s[8:11], 0 offen')
    for r in range(64, 68): a(f'v_mov_b32 v{r}, 0')
    a('v_cmp_gt_u32 vcc, 16, v0')
    a('s_and_saveexec_b64 s[16:17], vcc')
    a('v_add_u32 v23, 4096, v23')
    a('buffer_store_dwordx4 v[64:67], v23, s[8:11], 0 offen')
    a('s_mov_b64 exec, s[16:17]')
    ptr(a)
    a('s_endpgm')
    a.lab('P_pack')
    a('s_load_dwordx2 s[16:17], s[0:1], 64')
    a('s_load_dwordx2 s[18:19], s[0:1], 80')
    a(f's_sub_u32 s3, s2, {N_LN + 512}')
    a('v_lshrrev_b32 v1, 6, v0')
    a('v_and_b32 v2, 63, v0')
    a('v_readfirstlane_b32 s4, v1')
    a('v_and_b32 v3, 31, v2')
    a('v_lshrrev_b32 v4, 5, v2')
    a('v_lshlrev_b32 v5, 4, v2')
    a('s_waitcnt lgkmcnt(0)')
    a('s_cmp_ge_u32 s3, 56')
    a('s_cbranch_scc1 P_pack2')
    srd(a, 12, 16, 512 * 1792 * 2)
    a('s_mov_b32 s20, 3584')
    a('s_mov_b32 s5, s3')
    a('s_lshl_b32 s6, s4, 3')
    a('s_mul_i32 s7, s5, 32')
    a('s_add_u32 s7, s7, s6')
    a('s_lshl_b32 s7, s7, 10')
    a(f's_add_u32 s7, s7, {WS_W1F}')
    a('s_branch P_packc')
    a.lab('P_pack2')
    srd(a, 12, 18, 1792 * 512 * 2)
    a('s_mov_b32 s20, 1024')
    a('s_sub_u32 s3, s3, 56')
    a('s_lshl_b32 s3, s3, 2')
    a('s_add_u32 s3, s3, s4')
    a('s_and_b32 s5, s3, 15')
    a('s_lshr_b32 s6, s3, 4')
    a('s_lshl_b32 s6, s6, 3')
    a('s_mul_i32 s7, s5, 112')
    a('s_add_u32 s7, s7, s6')
    a('s_lshl_b32 s7, s7, 10')
    a(f's_add_u32 s7, s7, {WS_W2F}')
    a.lab('P_packc')
    a('s_lshl_b32 s21, s20, 3')
    a('v_mul_lo_u32 v6, v4, s21')
    a('v_lshl_add_u32 v6, v3, 1, v6')
    a('s_lshl_b32 s5, s5, 6')
    a('v_add_u32 v6, s5, v6')
    a('s_lshl_b32 s6, s6, 4')
    a('s_mul_i32 s6, s6, s20')
    for f in range(8):
        for j in range(8):
            a(f'buffer_load_ushort v{64+8*f+j}, v6, s[12:15], s6 offen')
            a('s_add_u32 s6, s6, s20')
        a('s_add_u32 s6, s6, s21')
    for f in range(8):
        a(f's_waitcnt vmcnt({8*(7-f) + f})')
        for q in range(4):
            a(f'v_lshl_or_b32 v{16+4*f+q}, v{64+8*f+2*q+1}, 16, v{64+8*f+2*q}')
        a(f'buffer_store_dwordx4 v[{16+4*f}:{19+4*f}], v5, s[8:11], s7 offen')
        a('s_add_u32 s7, s7, 1024')
    ptr(a)
    a.lab('P_end')
    a('s_endpgm')
    return a.text(), KD + 16384
```
